```python
import torch

def _softmax(x, axis=-1):
    return torch.softmax(x, dim=axis)
def _gelu(x):
    return torch.nn.functional.gelu(x, approximate="tanh")
def _silu(x):
    return torch.nn.functional.silu(x)
def _sigmoid(x):
    return torch.sigmoid(x)
def _layernorm(x, axis=-1, eps=1e-5):
    m = x.mean(dim=axis, keepdim=True)
    v = x.var(dim=axis, keepdim=True, unbiased=False)
    return (x - m) / torch.sqrt(v + eps)
def _scatter_add(tgt, idx, src, axis=0):
    return tgt.clone().index_add_(axis, idx, src)
def _segment_sum(src, seg, n):
    out = torch.zeros((n,) + src.shape[1:], dtype=src.dtype)
    return out.index_add_(0, seg, src)
def _pad(x, pw):
    flat = tuple(v for pair in reversed(pw) for v in pair)
    return torch.nn.functional.pad(x, flat)

kernel_name = 'interleave_layers__spectral_gfnet__spectral_gfnet__prompt'

def setup_inputs():

    _w = (lambda a: (lambda t: t.to(torch.bfloat16) if t.is_floating_point() else t)(torch.as_tensor(a)))
    def _A_setup():
        B, S, D = 1, 2048, 640
        Df = D // 2 + 1
        return {
            "x": _w((lambda *s: torch.randn(*s, dtype=torch.bfloat16) * 0.05)(B, S, D)),
            "w_r": _w((lambda *s: torch.randn(*s, dtype=torch.bfloat16) * 0.2)(S, Df) * 0.02),
            "w_i": _w((lambda *s: torch.randn(*s, dtype=torch.bfloat16) * 0.2)(S, Df) * 0.02),
        }
    _A_in = _A_setup()

    def _B_setup():
        B, S, D = 1, 2048, 640
        Df = D // 2 + 1
        return {
            "x": _w((lambda *s: torch.randn(*s, dtype=torch.bfloat16) * 0.05)(B, S, D)),
            "w_r": _w((lambda *s: torch.randn(*s, dtype=torch.bfloat16) * 0.2)(S, Df) * 0.02),
            "w_i": _w((lambda *s: torch.randn(*s, dtype=torch.bfloat16) * 0.2)(S, Df) * 0.02),
        }
    _B_in = _B_setup()

    return {
        "A_x": _A_in["x"],
        "A_w_r": _A_in["w_r"],
        "A_w_i": _A_in["w_i"],
        "B_x": _B_in["x"],
        "B_w_r": _B_in["w_r"],
        "B_w_i": _B_in["w_i"],
    }

def reference(A_x, A_w_r, A_w_i, B_x, B_w_r, B_w_i):
    def _A_ref(x, w_r, w_i):
        B, S, D = x.shape
        X = (lambda x, axes=(-2,-1): torch.fft.rfft2(x.float(), dim=axes))(x, axes=(-2, -1))
        W = w_r + 1j * w_i
        X = X * W
        y = (lambda x, s, axes=(-2,-1): torch.fft.irfft2(x, s=s, dim=axes).to(torch.bfloat16))(X, (S, D), axes=(-2, -1))
        return y

    def _B_ref(x, w_r, w_i):
        B, S, D = x.shape
        X = (lambda x, axes=(-2,-1): torch.fft.rfft2(x.float(), dim=axes))(x, axes=(-2, -1))
        W = w_r + 1j * w_i
        X = X * W
        y = (lambda x, s, axes=(-2,-1): torch.fft.irfft2(x, s=s, dim=axes).to(torch.bfloat16))(X, (S, D), axes=(-2, -1))
        return y

    x = A_x
    x = x + _A_ref(_layernorm(x, axis=-1), A_w_r, A_w_i)
    x = x + _B_ref(_layernorm(x, axis=-1), B_w_r, B_w_i)
    x = x + _A_ref(_layernorm(x, axis=-1), A_w_r, A_w_i)
    x = x + _B_ref(_layernorm(x, axis=-1), B_w_r, B_w_i)
    return x
```

```python
import re
import struct

TRANS = ("v_exp_", "v_log_", "v_rcp_", "v_rsq_", "v_sqrt_", "v_sin_", "v_cos_")
REG_RE = re.compile(r"^(-|\|)?(?:abs\()?([vsa])(?:(\d+)|\[(\d+):(\d+)\])\)?\|?$")


def f2u(x):
    return struct.unpack("<I", struct.pack("<f", x))[0]


def fhex(x):
    return "0x%08x" % f2u(x)


def regs_of(op):
    op = op.strip()
    if op == "vcc":
        return {"vcc"}
    if op == "exec":
        return {"exec"}
    if op == "m0":
        return {"m0"}
    m = REG_RE.match(op)
    if not m:
        return set()
    k = m.group(2)
    if m.group(3) is not None:
        return {k + m.group(3)}
    return {k + str(i) for i in range(int(m.group(4)), int(m.group(5)) + 1)}


class Ins:
    def __init__(self, text):
        self.text = text
        t = text.split(";")[0].strip()
        self.label = None
        self.op = None
        self.directive = False
        if not t:
            self.directive = True
            return
        if t.endswith(":"):
            self.label = t[:-1]
            return
        if t.startswith("."):
            self.directive = True
            return
        parts = t.split(None, 1)
        self.op = parts[0]
        rest = parts[1] if len(parts) > 1 else ""
        rest = re.sub(r"(\w+):\[([01,]+)\]", lambda m: m.group(1) + ":" + m.group(2).replace(",", ""), rest)
        ops = [o.strip() for o in rest.split(",")] if rest else []
        self.mods = ""
        if ops:
            last = ops[-1].split(None, 1)
            ops[-1] = last[0]
            self.mods = last[1] if len(last) > 1 else ""
        self.ops = ops
        op = self.op
        self.is_mfma = op.startswith("v_mfma")
        self.is_valu = op.startswith("v_") and not self.is_mfma
        self.is_trans = op.startswith(TRANS)
        self.is_dot = op.startswith("v_dot")
        self.is_dpp = "_dpp" in op
        self.is_ds = op.startswith("ds_")
        self.is_vmem = op.startswith(("buffer_", "global_"))
        self.is_salu = op.startswith("s_")
        self.is_branch = op.startswith(("s_branch", "s_cbranch"))
        self.is_ldsdma = self.is_vmem and re.search(r"\blds\b", self.mods) is not None
        R = [regs_of(o) for o in ops]
        self.w, self.r = set(), set()
        self.srcc = set()
        self.store_data = set()
        if self.is_mfma:
            self.w = R[0]
            self.r = R[1] | R[2] | R[3]
            self.ab = R[1] | R[2]
            self.srcc = R[3]
            self.passes = 8 if "32x32" in op else 4
        elif self.is_valu:
            if op.startswith(("v_swap", "v_permlane16_swap", "v_permlane32_swap")):
                self.w = R[0] | R[1]
                self.r = R[0] | R[1]
            elif op.startswith(("v_add_co", "v_addc_co", "v_sub_co", "v_subb_co")):
                self.w = R[0] | R[1]
                self.r = set().union(*R[2:])
            else:
                self.w = set(R[0])
                self.r = set().union(*R[1:]) if len(R) > 1 else set()
                if op.startswith(("v_fmac", "v_dot2c", "v_writelane")) or self.is_dpp:
                    self.r |= R[0]
                if op.startswith("v_cmpx"):
                    self.w |= {"exec"}
        elif self.is_ds:
            if op.startswith(("ds_read", "ds_bpermute", "ds_swizzle", "ds_permute")):
                self.w = R[0]
                self.r = set().union(*R[1:])
            else:
                self.r = set().union(*R)
        elif self.is_vmem:
            if "load" in op and not self.is_ldsdma:
                self.w = R[0]
                self.r = set().union(*R[1:])
            else:
                self.r = set().union(*R)
                if "store" in op and ("x3" in op or "x4" in op):
                    self.store_data = R[0] if op.startswith("buffer_") else R[1]
        elif self.is_salu:
            if op.startswith(("s_cmp", "s_bitcmp", "s_waitcnt", "s_barrier", "s_nop", "s_endpgm", "s_branch",
                              "s_cbranch", "s_setprio", "s_sleep")):
                self.r = set().union(*R) if R else set()
            else:
                self.w = set(R[0])
                self.r = set().union(*R[1:]) if len(R) > 1 else set()
                if "saveexec" in op:
                    self.w |= {"exec"}

    def states(self):
        if self.op is None:
            return 0
        if self.op == "s_nop":
            return int(self.ops[0]) + 1
        return 1


def is_s(x):
    return x == "vcc" or x.startswith("s")


def required(p, c):
    n = 0
    pv = {x for x in p.w if x[0] in "va" and x != "vcc"}
    ps = {x for x in p.w if is_s(x)}
    if p.is_valu:
        if c.is_mfma and pv & c.r:
            n = max(n, 3 if p.is_dot else 2)
        if c.is_valu:
            if p.is_trans and pv & c.r:
                n = max(n, 1)
            if p.is_dot and pv & (c.r | c.w):
                same_acc = c.op == p.op and not (pv & (regs_of(c.ops[1]) | regs_of(c.ops[2])))
                if not same_acc:
                    n = max(n, 3)
            if c.is_dpp and pv & c.r:
                n = max(n, 2)
            if c.op.startswith("v_permlane") and pv & c.r:
                n = max(n, 2)
            if c.op.startswith(("v_readlane", "v_readfirstlane")) and pv & c.r:
                n = max(n, 1)
            if ps & c.r:
                n = max(n, 4 if c.op.startswith(("v_readlane", "v_writelane")) else 2)
            if "exec" in p.w:
                n = max(n, 5)
        if p.is_dot and (c.is_ds or c.is_vmem) and pv & c.r:
            n = max(n, 3)
        if c.is_vmem and ps & c.r:
            n = max(n, 5)
        if c.is_mfma and "exec" in p.w:
            n = max(n, 4)
        if c.is_salu and ps & c.r:
            n = max(n, 1)
    if p.is_mfma:
        big = {4: 8, 8: 12}[p.passes]
        if c.is_mfma:
            if p.w & c.ab:
                n = max(n, big)
            if p.w & c.srcc and not (p.w == c.srcc and p.op == c.op):
                n = max(n, big)
            if p.w & c.w and p.w != c.srcc:
                n = max(n, big - 2)
        elif c.is_valu or c.is_ds or c.is_vmem:
            if p.w & (c.r | c.w):
                n = max(n, big)
            if c.is_valu and p.srcc & c.w:
                n = max(n, {4: 3, 8: 7}[p.passes])
    if p.store_data and p.store_data & c.w:
        n = max(n, 2)
    if p.is_salu and "m0" in p.w and c.is_ldsdma:
        n = max(n, 1)
    return n


def pad_hazards(lines):
    ins = [Ins(t) for t in lines]
    MAXD = 13
    changed = True
    while changed:
        changed = False
        srcs = {}
        for i, x in enumerate(ins):
            if x.op and x.is_branch:
                srcs.setdefault(x.ops[0], []).append(i)
        i = 0
        while i < len(ins):
            c = ins[i]
            if c.op is None or c.op == "s_nop":
                i += 1
                continue
            need = 0
            stack = [(i - 1, 0)]
            seen = {}
            while stack:
                j, d = stack.pop()
                while j >= 0 and d < MAXD:
                    if seen.get(j, 99) <= d:
                        break
                    seen[j] = d
                    p = ins[j]
                    if p.label:
                        for s in srcs.get(p.label, []):
                            stack.append((s - 1, d + 1))
                        k = j - 1
                        while k >= 0 and ins[k].op is None and not ins[k].label:
                            k -= 1
                        if k >= 0 and ins[k].op in ("s_branch", "s_endpgm"):
                            break
                    elif p.op:
                        need = max(need, required(p, c) - d)
                        d += p.states()
                    j -= 1
            if need > 0:
                ins.insert(i, Ins("    s_nop %d" % (need - 1)))
                changed = True
                break
            i += 1
    return [x.text for x in ins]


class Asm:
    def __init__(self):
        self.lines = []
        self.nlab = 0

    def __call__(self, text):
        for t in text.split("\n"):
            t = t.strip()
            if t:
                self.lines.append(t if t.endswith(":") else "    " + t)

    def c(self, text):
        self.lines.append("    ; " + text)

    def lab(self, base):
        self.nlab += 1
        return "L_%s_%d" % (base, self.nlab)

    def text(self):
        return "\n".join(pad_hazards(self.lines)) + "\n"


def v(i, n=1):
    return "v%d" % i if n == 1 else "v[%d:%d]" % (i, i + n - 1)


def s(i, n=1):
    return "s%d" % i if n == 1 else "s[%d:%d]" % (i, i + n - 1)


def bitop(f):
    t = 0
    for i in range(8):
        if f((i >> 2) & 1, (i >> 1) & 1, i & 1) & 1:
            t |= 1 << i
    return "bitop3:0x%02x" % t
```

```python
import sys
from asmlib import Asm, v, s, fhex, bitop

NAME = "interleave_layers__spectral_gfnet__spectral_gfnet__prompt_kernel"

WS_E = 0
WS_S = 0x10000
WS_P = 0x100000
P_SZ = 655360
WS_X = 0x300000
WS_D = 0x600000
WS_W = 0x900000
WS_T = 0xF00000
WS_SIZE = 0x1000000

L_XI = 0
L_TB = 10240
L_RED = L_TB + 12672
L_S0 = L_RED + 1536
L_WI = L_S0 + 64
L_E2 = L_WI
L_E1 = L_WI + 20992
L_END = L_E1 + 16640

SPIN = 1 << 17

SX, SWS, SO, SWR, SWI = 4, 8, 12, 16, 20
sW, sRHO, sC, sT, sL, sSPIN = 24, 25, 26, 27, 28, 29
sA, sB, sD, sE = 30, 31, 32, 33
sRANK, sROWB = 34, 35
sK = 36
sSOFF, sPOFF, sWOFF, sSIG, sSST, sPG = 54, 55, 56, 57, 58, 59
sM = 60
sST = 64

vTID, vL, vN, vG, vNF, vGF = 0, 1, 2, 3, 4, 5
vT = 6
vM1 = 7
X = 8
XO = 16
WC = 24
WO = 32
TF = 40
TI = 48
FM = 56
MA, MI0, MI1 = 62, 64, 66
DR, DI = 68, 72
TM = 76
OP = 84
SV = 88
aS, aP, aG, aE1W, aE1R, aE2W, aE2R, aRW, aRR, aW = 90, 91, 92, 93, 94, 95, 96, 97, 98, 99
PQ = 100
S1I = 116
mP, mQ, mS = 124, 125, 126
WL = 100
S1B = 8
M0A, M0B, M1 = 16, 20, 24
NV = 128

B_TAG = bitop(lambda d, m, t: (d & ~m) ^ t)
B_ANDX = bitop(lambda d, m, t: (d & m) ^ t)
B_MIS2 = bitop(lambda a, b, t: (a ^ t) | (b ^ t))
B_ORAND = bitop(lambda a, b, m: (a | b) & m)


def gen(stamps=False, opt=None):
    opt = opt or {}
    a = Asm()
    nst = [0]

    def stamp():
        if stamps:
            a("s_memrealtime %s" % s(sST + 2 * nst[0], 2))
            nst[0] += 1

    def srd(d, ptr, nbytes):
        a("s_mov_b32 %s, %s" % (s(d), s(ptr)))
        a("s_mov_b32 %s, %s" % (s(d + 1), s(ptr + 1)))
        a("s_mov_b32 %s, 0x%x" % (s(d + 2), nbytes))
        a("s_mov_b32 %s, 0x00020000" % s(d + 3))

    def ang(dst, f, off, a0):
        if off == 0:
            a("v_mov_b32 %s, %s" % (v(dst), v(a0)))
        elif off == 1:
            a("v_add_f32 %s, %s, %s" % (v(dst), v(f), v(a0)))
        else:
            a("v_fmamk_f32 %s, %s, %s, %s" % (v(dst), v(f), fhex(off), v(a0)))

    def cosrow(dst, f, a0, offs, tmp, amp=None):
        for base in range(0, len(offs), 8):
            o = offs[base:base + 8]
            for e, off in enumerate(o):
                ang(tmp + e, f, off, a0)
            for e in range(len(o)):
                a("v_cos_f32 %s, %s" % (v(tmp + e), v(tmp + e)))
            if amp is not None:
                for e in range(len(o)):
                    a("v_mul_f32 %s, %s, %s" % (v(tmp + e), v(amp), v(tmp + e)))
            for e in range(0, len(o), 2):
                a("v_cvt_pk_bf16_f32 %s, %s, %s" % (v(dst + (base + e) // 2), v(tmp + e), v(tmp + e + 1)))

    def retry(loop):
        a("s_add_u32 %s, %s, 1" % (s(sSPIN), s(sSPIN)))
        a("s_cmp_lt_u32 %s, 0x%x" % (s(sSPIN), SPIN))
        a("s_cbranch_scc1 %s" % loop)

    def check4(r, mask_v, done):
        a("v_bitop3_b32 %s, %s, %s, %s %s" % (v(TM), v(r), v(r + 1), v(vT), B_MIS2))
        a("v_bitop3_b32 %s, %s, %s, %s %s" % (v(TM + 1), v(r + 2), v(r + 3), v(vT), B_MIS2))
        a("v_bitop3_b32 %s, %s, %s, %s %s" % (v(TM), v(TM), v(TM + 1), mask_v, B_ORAND))
        a("v_cmp_ne_u32 vcc, 0, %s" % v(TM))
        a("s_cbranch_vccz %s" % done)

    def unpack(src, lo, hi):
        a("v_lshl_or_b32 %s, %s, 16, %s" % (v(lo), v(src), v(TM + 6)))
        a("v_and_or_b32 %s, %s, %s, %s" % (v(hi), v(src), s(sA), v(TM + 6)))
        a("v_and_b32 %s, %s, %s" % (v(lo), s(sB), v(lo)))

    def cmul(c, sn, sign):
        for i in range(4):
            a("v_mul_f32 %s, %s, %s" % (v(TM + i), v(c + i), v(DRc[0] + i)))
        for i in range(4):
            if sign > 0:
                a("v_mul_f32 %s, %s, %s" % (v(TM + 4 + i), v(sn + i), v(DRc[0] + i)))
            else:
                a("v_mul_f32 %s, -%s, %s" % (v(TM + 4 + i), v(sn + i), v(DRc[0] + i)))
        for i in range(4):
            if sign > 0:
                a("v_fma_f32 %s, -%s, %s, %s" % (v(TM + i), v(sn + i), v(DRc[1] + i), v(TM + i)))
            else:
                a("v_fmac_f32 %s, %s, %s" % (v(TM + i), v(sn + i), v(DRc[1] + i)))
        for i in range(4):
            a("v_fmac_f32 %s, %s, %s" % (v(TM + 4 + i), v(c + i), v(DRc[1] + i)))

    DRc = (DR, DI)

    def pack(first, second):
        a("v_cvt_pk_bf16_f32 %s, %s, %s" % (v(OP), v(first), v(first + 1)))
        a("v_cvt_pk_bf16_f32 %s, %s, %s" % (v(OP + 1), v(first + 2), v(first + 3)))
        a("v_cvt_pk_bf16_f32 %s, %s, %s" % (v(OP + 2), v(second), v(second + 1)))
        a("v_cvt_pk_bf16_f32 %s, %s, %s" % (v(OP + 3), v(second + 2), v(second + 3)))

    FRE, FIM = v(FM + 2, 4), v(FM, 4)

    def radix16(data_is_a, inverse):
        m_re, m_im = (FIM, FRE) if inverse else (FRE, FIM)
        for d, m in ((DR, m_re), (DI, m_im)):
            ab = (v(OP, 4), m) if data_is_a else (m, v(OP, 4))
            a("v_mfma_f32_16x16x32_bf16 %s, %s, %s, 0" % (v(d, 4), ab[0], ab[1]))

    def barrier():
        a("s_waitcnt lgkmcnt(0)")
        a("s_barrier")

    a("s_cmp_ge_u32 s2, 256")
    a("s_cbranch_scc1 L_end")
    a("s_load_dwordx16 %s, s[0:1], 0" % s(sK, 16))
    a("s_load_dwordx2 %s, s[0:1], 64" % s(sK + 16, 2))
    stamp()
    a("v_lshrrev_b32 %s, 6, v0" % v(TM))
    a("v_and_b32 %s, 63, v0" % v(vL))
    a("v_readfirstlane_b32 %s, %s" % (s(sW), v(TM)))
    a.c("pull the kernel's code into L2")
    a("s_getpc_b64 %s" % s(sA, 2))
    a("s_and_b32 %s, %s, 0xffffff00" % (s(sA), s(sA)))
    a("v_lshlrev_b32 %s, 7, %s" % (v(TM), v(vL)))
    a("v_mov_b32 %s, 0" % v(TM + 1))
    a("v_lshl_add_u64 %s, %s, 0, %s" % (v(TM, 2), v(TM, 2), s(sA, 2)))
    a("s_cmp_lg_u32 %s, 15" % s(sW))
    a("s_cbranch_scc1 L_nopf")
    a("global_load_dword %s, %s, off" % (v(NV - 1), v(TM, 2)))
    a("L_nopf:")
    a("s_and_b32 %s, s2, 7" % s(sA))
    a("s_lshr_b32 %s, s2, 3" % s(sRANK))
    a("s_lshl_b32 %s, %s, 5" % (s(sRHO), s(sA)))
    a("s_add_u32 %s, %s, %s" % (s(sRHO), s(sRHO), s(sRANK)))
    a("s_mul_i32 %s, %s, 20" % (s(sC), s(sA)))
    a("s_add_u32 %s, %s, %s" % (s(sC), s(sC), s(sRANK)))
    a("s_lshl_b32 %s, %s, 13" % (s(sSOFF), s(sA)))
    a("s_add_u32 %s, %s, 0x%x" % (s(sSOFF), s(sSOFF), WS_S))
    a.c("W task: sigma = (rank < 16 ? 128 : 0) + (rank & 15) * 8 + (b & 7) = b ^ 128")
    a("s_xor_b32 %s, s2, 128" % s(sSIG))
    a.c("first row = 512*g + 16*n1 + 4*a with rho = (n1*4+g)*4+a")
    a("s_bfe_u32 %s, %s, 0x20002" % (s(sA), s(sRHO)))
    a("s_lshl_b32 %s, %s, 9" % (s(sA), s(sA)))
    a("s_and_b32 %s, %s, 0xf0" % (s(sB), s(sRHO)))
    a("s_add_u32 %s, %s, %s" % (s(sA), s(sA), s(sB)))
    a("s_and_b32 %s, %s, 3" % (s(sB), s(sRHO)))
    a("s_lshl_b32 %s, %s, 2" % (s(sB), s(sB)))
    a("s_add_u32 %s, %s, %s" % (s(sA), s(sA), s(sB)))
    a("s_mul_i32 %s, %s, 1280" % (s(sROWB), s(sA)))
    a("s_lshl_b32 %s, %s, 10" % (s(sA), s(sW)))
    a("s_mov_b32 m0, %s" % s(sA))
    a("s_cmp_ge_u32 %s, 5" % s(sW))
    a("s_cselect_b32 %s, %d, 0" % (s(sB), 256 * 1280 - 5120))
    a("s_add_u32 %s, %s, %s" % (s(sA), s(sA), s(sB)))
    a("s_add_u32 %s, %s, %s" % (s(sA), s(sA), s(sROWB)))
    a("v_lshlrev_b32 %s, 4, %s" % (v(TM + 2), v(vL)))
    a("s_mov_b32 %s, 0" % s(sSPIN))
    a("s_waitcnt lgkmcnt(0)")
    srd(SX, sK, 2621440)
    a("s_cmp_ge_u32 %s, 10" % s(sW))
    a("s_cbranch_scc1 L_nox")
    a("buffer_load_dwordx4 %s, %s, %s offen lds" % (v(TM + 2), s(SX, 4), s(sA)))
    a("L_nox:")
    a("s_load_dword %s, %s, 0x%x" % (s(sT), s(sK + 16, 2), WS_E))
    srd(SWS, sK + 16, WS_SIZE)
    srd(SO, sK + 12, 2621440)
    a("s_cmp_ge_u32 %s, 128" % s(sSIG))
    a("s_cselect_b64 %s, %s, %s" % (s(SWR, 2), s(sK + 8, 2), s(sK + 2, 2)))
    a("s_cselect_b64 %s, %s, %s" % (s(SWI, 2), s(sK + 10, 2), s(sK + 4, 2)))
    for d in (SWR, SWI):
        a("s_mov_b32 %s, %d" % (s(d + 2), 2048 * 642))
        a("s_mov_b32 %s, 0x00020000" % s(d + 3))
    a.c("W row p = q + 8*(4*kq+kk) + 128*(4*g+i); sigma = (q,g,kq), wave = (i,kk)")
    a("s_bfe_u32 %s, %s, 0x30004" % (s(sA), s(sSIG)))
    a("s_and_b32 %s, %s, 3" % (s(sB), s(sSIG)))
    a("s_lshl_b32 %s, %s, 5" % (s(sB), s(sB)))
    a("s_add_u32 %s, %s, %s" % (s(sA), s(sA), s(sB)))
    a("s_bfe_u32 %s, %s, 0x20002" % (s(sB), s(sSIG)))
    a("s_lshl_b32 %s, %s, 9" % (s(sB), s(sB)))
    a("s_add_u32 %s, %s, %s" % (s(sA), s(sA), s(sB)))
    a("s_and_b32 %s, %s, 3" % (s(sB), s(sW)))
    a("s_lshl_b32 %s, %s, 3" % (s(sB), s(sB)))
    a("s_add_u32 %s, %s, %s" % (s(sA), s(sA), s(sB)))
    a("s_lshr_b32 %s, %s, 2" % (s(sB), s(sW)))
    a("s_lshl_b32 %s, %s, 7" % (s(sB), s(sB)))
    a("s_add_u32 %s, %s, %s" % (s(sA), s(sA), s(sB)))
    a("s_mul_i32 %s, %s, 642" % (s(sA), s(sA)))
    a("s_and_b32 %s, %s, 0xfffffff0" % (s(sA), s(sA)))
    a("s_mul_i32 %s, %s, 656" % (s(sB), s(sW)))
    a("s_add_u32 m0, %s, %d" % (s(sB), L_WI))
    a("s_bfm_b64 exec, 41, 0")
    a("buffer_load_dwordx4 %s, %s, %s offen lds" % (v(TM + 2), s(SWR, 4), s(sA)))
    a("s_add_u32 m0, %s, %d" % (s(sB), L_WI + 16 * 656))
    a("buffer_load_dwordx4 %s, %s, %s offen lds" % (v(TM + 2), s(SWI, 4), s(sA)))
    a("s_mov_b64 exec, -1")

    a("v_and_b32 %s, 15, %s" % (v(vN), v(vL)))
    a("v_lshrrev_b32 %s, 4, %s" % (v(vG), v(vL)))
    a("v_cvt_f32_u32 %s, %s" % (v(vNF), v(vN)))
    a("v_cvt_f32_u32 %s, %s" % (v(vGF), v(vG)))
    a("v_mov_b32 %s, 0x00010001" % v(vM1))
    a.c("s[60:61] = lanes with g >= 2; s[62:63] = odd lanes")
    a("s_mov_b32 %s, 0" % s(sM))
    a("s_mov_b32 %s, -1" % s(sM + 1))
    a("s_mov_b32 %s, 0xaaaaaaaa" % s(sM + 2))
    a("s_mov_b32 %s, 0xaaaaaaaa" % s(sM + 3))
    a.c("sign mask: odd lanes with g >= 2")
    a("s_and_b64 vcc, %s, %s" % (s(sM, 2), s(sM + 2, 2)))
    a("v_mov_b32 %s, 0x80008000" % v(TM))
    a("v_cndmask_b32 %s, 0, %s, vcc" % (v(mS), v(TM)))

    F, A0, AMP, T8 = DR, DR + 1, DR + 2, TM
    a.c("stage-1 matrix: lane = output index, K = d1")
    a("s_lshr_b32 %s, %s, 2" % (s(sA), s(sW)))
    a("s_lshl_b32 %s, %s, 4" % (s(sA), s(sA)))
    a("v_add_u32 %s, %s, %s" % (v(DI), s(sA), v(vN)))
    a("v_lshrrev_b32 %s, 1, %s" % (v(F), v(DI)))
    a("v_cmp_eq_u32 vcc, 1, %s" % v(DI))
    a("v_mov_b32 %s, 0x3e800000" % v(DI + 1))
    a("v_cndmask_b32 %s, 0, %s, %s" % (v(A0), v(DI + 1), s(sM + 2, 2)))
    a("v_cndmask_b32 %s, %s, 20, vcc" % (v(F), v(F)))
    a("v_cndmask_b32 %s, %s, 0, vcc" % (v(A0), v(A0)))
    a("v_cvt_f32_u32 %s, %s" % (v(F), v(F)))
    a("v_mul_f32 %s, %s, %s" % (v(F), fhex(1 / 40), v(F)))
    a("v_mul_f32 %s, 4.0, %s" % (v(DI + 2), v(vGF)))
    a("v_fmac_f32 %s, %s, %s" % (v(A0), v(F), v(DI + 2)))
    cosrow(S1B, F, A0, [0, 1, 2, 3, 16, 17, 18, 19, 32, 33, 34, 35], T8)
    a("v_cndmask_b32 %s, %s, 0, %s" % (v(S1B + 6), v(S1B + 4), s(sM, 2)))
    a("v_cndmask_b32 %s, %s, 0, %s" % (v(S1B + 7), v(S1B + 5), s(sM, 2)))
    a("v_mov_b32 %s, 0" % v(S1B + 4))
    a("v_mov_b32 %s, 0" % v(S1B + 5))

    a.c("stage-2 matrices: lane = k2, K = (half, d2)")
    a("s_cmp_ge_u32 %s, 10" % s(sW))
    a("s_cbranch_scc1 L_c2done")
    D8 = DI + 2
    PH = DI + 3
    a("v_and_b32 %s, 1, %s" % (v(D8), v(vG)))
    a("v_lshlrev_b32 %s, 3, %s" % (v(D8), v(D8)))
    a("v_cvt_f32_u32 %s, %s" % (v(D8), v(D8)))
    a("v_cndmask_b32 %s, 0, -%s, %s" % (v(PH), v(DI + 1), s(sM, 2)))
    a("s_lshl_b32 %s, %s, 1" % (s(sA), s(sW)))
    a("v_mul_u32_u24 %s, 40, %s" % (v(DI), v(vN)))
    a("v_add_u32 %s, %s, %s" % (v(DI), s(sA), v(DI)))
    a("v_add_u32 %s, 1, %s" % (v(F), v(DI)))
    a("v_cvt_f32_u32 %s, %s" % (v(F), v(F)))
    a("v_mul_f32 %s, %s, %s" % (v(F), fhex(1 / 640), v(F)))
    a("v_fma_f32 %s, %s, %s, %s" % (v(A0), v(F), v(D8), v(PH)))
    cosrow(M1, F, A0, list(range(8)), T8)
    a("s_cmp_eq_u32 %s, 0" % s(sW))
    a("s_cbranch_scc1 L_c2sp")
    a("v_cvt_f32_u32 %s, %s" % (v(F), v(DI)))
    a("v_mul_f32 %s, %s, %s" % (v(F), fhex(1 / 640), v(F)))
    a("v_fma_f32 %s, %s, %s, %s" % (v(A0), v(F), v(D8), v(PH)))
    cosrow(M0A, F, A0, list(range(8)), T8)
    a("s_branch L_c2done")
    a("L_c2sp:")
    a.c("tile 0: slots 0..7 come from class 0 (slot 0 = Nyquist / sqrt 2), slots 8..15 from class 20")
    a("v_cmp_le_u32 vcc, 8, %s" % v(vN))
    a("v_add_u32 %s, 20, %s" % (v(F), v(DI)))
    a("v_cndmask_b32 %s, %s, %s, vcc" % (v(DI), v(DI), v(F)))
    a("s_xor_b64 %s, vcc, %s" % (s(sA, 2), s(sM, 2)))
    a("v_cmp_eq_u32 vcc, 0, %s" % v(vN))
    a("v_mov_b32 %s, 320" % v(F))
    a("v_cndmask_b32 %s, %s, %s, vcc" % (v(F), v(DI), v(F)))
    a("v_cvt_f32_u32 %s, %s" % (v(F), v(F)))
    a("v_mul_f32 %s, %s, %s" % (v(F), fhex(1 / 640), v(F)))
    a("v_mov_b32 %s, %s" % (v(AMP), fhex(0.5 ** 0.5)))
    a("v_cndmask_b32 %s, 1.0, %s, vcc" % (v(AMP), v(AMP)))
    a("v_cndmask_b32 %s, %s, 0, %s" % (v(AMP), v(AMP), s(sA, 2)))
    a("v_mul_f32 %s, %s, %s" % (v(A0), v(F), v(D8)))
    cosrow(M0A, F, A0, list(range(8)), T8, AMP)
    a("s_andn2_b64 %s, %s, vcc" % (s(sA, 2), s(sA, 2)))
    a("v_cndmask_b32 %s, %s, -%s, %s" % (v(PH), v(DI + 1), v(DI + 1), s(sM, 2)))
    a("v_cndmask_b32 %s, 0, 1.0, %s" % (v(AMP), s(sA, 2)))
    a("v_add_f32 %s, %s, %s" % (v(A0), v(A0), v(PH)))
    cosrow(M0B, F, A0, list(range(8)), T8, AMP)
    a("L_c2done:")

    G4 = DI
    a("v_mul_f32 %s, 4.0, %s" % (v(G4), v(vGF)))
    a.c("16-point DFT matrix")
    a("v_mul_f32 %s, %s, %s" % (v(F), fhex(1 / 16), v(vNF)))
    a("v_mul_f32 %s, %s, %s" % (v(A0), v(F), v(G4)))
    for e in range(4):
        ang(T8 + e, F, e, A0)
    for e in range(4):
        a("v_sin_f32 %s, %s" % (v(T8 + 4 + e), v(T8 + e)))
    for e in range(4):
        a("v_cos_f32 %s, %s" % (v(T8 + e), v(T8 + e)))
    for e in range(2):
        a("v_cvt_pk_bf16_f32 %s, -%s, -%s" % (v(FM + e), v(T8 + 4 + 2 * e), v(T8 + 5 + 2 * e)))
        a("v_cvt_pk_bf16_f32 %s, %s, %s" % (v(FM + 4 + e), v(T8 + 4 + 2 * e), v(T8 + 5 + 2 * e)))
        a("v_cvt_pk_bf16_f32 %s, %s, %s" % (v(FM + 2 + e), v(T8 + 2 * e), v(T8 + 1 + 2 * e)))
    a.c("twiddles n2*(q+8*k1)/2048 in both layouts")
    a("s_and_b32 %s, %s, 7" % (s(sA), s(sW)))
    a("v_cvt_f32_u32 %s, %s" % (v(AMP), s(sA)))
    a("v_fmamk_f32 %s, %s, %s, %s" % (v(F), v(vNF), fhex(8), v(AMP)))
    a("v_mul_f32 %s, %s, %s" % (v(F), fhex(1 / 2048), v(F)))
    a("v_mul_f32 %s, %s, %s" % (v(A0), v(F), v(G4)))
    for e in range(4):
        ang(TF + e, F, e, A0)
    a("v_fmamk_f32 %s, %s, %s, %s" % (v(A0), v(G4), fhex(8), v(AMP)))
    a("v_mul_f32 %s, %s, %s" % (v(F), fhex(1 / 2048), v(vNF)))
    a("v_mul_f32 %s, %s, %s" % (v(A0), v(F), v(A0)))
    for e in range(4):
        ang(TI + e, F, 8 * e, A0)
    for t in (TF, TI):
        for e in range(4):
            a("v_sin_f32 %s, %s" % (v(t + 4 + e), v(t + e)))
        for e in range(4):
            a("v_cos_f32 %s, %s" % (v(t + e), v(t + e)))
    a.c("radix-8 matrices, angle q*(16*j+n1)/128")
    H, Q4, W1 = DI + 1, DI + 2, DI + 3
    a("v_lshrrev_b32 %s, 1, %s" % (v(H), v(vN)))
    a("v_cvt_f32_u32 %s, %s" % (v(H), v(H)))
    a("v_mov_b32 %s, 0x3e800000" % v(Q4))
    a("v_cndmask_b32 %s, 0, %s, %s" % (v(Q4), v(Q4), s(sM + 2, 2)))
    a("v_cvt_f32_u32 %s, %s" % (v(W1), s(sW)))
    a("v_mul_f32 %s, %s, %s" % (v(F), fhex(1 / 128), v(H)))
    a("v_fmamk_f32 %s, %s, %s, %s" % (v(A0), v(vGF), fhex(32), v(W1)))
    a("v_fma_f32 %s, %s, %s, %s" % (v(T8), v(F), v(A0), v(Q4)))
    ang(T8 + 1, F, 16, T8)
    a("v_fmamk_f32 %s, %s, %s, %s" % (v(F), v(H), fhex(16), v(W1)))
    a("v_mul_f32 %s, %s, %s" % (v(F), fhex(1 / 128), v(F)))
    a("v_add_f32 %s, %s, %s" % (v(A0), v(vGF), v(vGF)))
    a("v_fma_f32 %s, %s, %s, -%s" % (v(T8 + 2), v(F), v(A0), v(Q4)))
    ang(T8 + 3, F, 1, T8 + 2)
    for e in range(4):
        a("v_sin_f32 %s, %s" % (v(T8 + 4 + e), v(T8 + e)))
    for e in range(4):
        a("v_cos_f32 %s, %s" % (v(T8 + e), v(T8 + e)))
    for e in range(2):
        a("v_cvt_pk_bf16_f32 %s, %s, %s" % (v(MA + e), v(T8 + e), v(T8 + 4 + e)))
        a("v_cvt_pk_bf16_f32 %s, %s, -%s" % (v(MI1 + e), v(T8 + 2 + e), v(T8 + 6 + e)))
    a.c("the Nyquist column (c = 0, tile 0) keeps only the real part")
    a("s_cmp_eq_u32 %s, 0" % s(sC))
    a("s_cselect_b64 vcc, %s, 0" % s(sM + 2, 2))
    for e in range(2):
        a("v_cndmask_b32 %s, %s, 0, vcc" % (v(MI0 + e), v(MI1 + e)))
    a.c("addresses")
    a("v_lshlrev_b32 %s, 3, v0" % v(aS))
    a("s_lshl_b32 %s, %s, 2" % (s(sA), s(sW)))
    a("v_add_u32 %s, %s, %s" % (v(T8), s(sA), v(vG)))
    a("v_mul_u32_u24 %s, 10240, %s" % (v(aP), v(T8)))
    a("v_lshl_add_u32 %s, %s, 2, %s" % (v(aP), v(vN), v(aP)))
    a("s_lshl_b32 %s, %s, 6" % (s(sPOFF), s(sC)))
    a("s_add_u32 %s, %s, 0x%x" % (s(sPOFF), s(sPOFF), WS_P))
    a("s_and_b32 %s, %s, 63" % (s(sB), s(sC)))
    a("s_mul_i32 %s, %s, 10240" % (s(sPG), s(sB)))
    a("s_add_u32 %s, %s, 0x%x" % (s(sPG), s(sPG), WS_P))
    a("s_lshl_b32 %s, %s, 10" % (s(sA), s(sW)))
    a("v_lshl_add_u32 %s, %s, 2, %s" % (v(aG), v(vL), s(sA)))
    a("s_lshl_b32 %s, %s, 7" % (s(sSST), s(sB)))
    a("s_cmp_ge_u32 %s, 64" % s(sC))
    a("s_cselect_b32 %s, 0x10000, 0" % s(sA))
    a("s_add_u32 %s, %s, %s" % (s(sSST), s(sSST), s(sA)))
    a("s_lshl_b32 %s, %s, 14" % (s(sA), s(sW)))
    a("s_add_u32 %s, %s, %s" % (s(sSST), s(sSST), s(sA)))
    a("s_add_u32 %s, %s, 0x%x" % (s(sSST), s(sSST), WS_S + 0x20000))
    a("s_lshl_b32 %s, %s, 5" % (s(sA), s(sW)))
    a("s_add_u32 %s, %s, %d" % (s(sA), s(sA), L_E1))
    a("v_mul_u32_u24 %s, 520, %s" % (v(aE1W), v(vN)))
    a("v_lshl_add_u32 %s, %s, 3, %s" % (v(aE1W), v(vG), v(aE1W)))
    a("v_add_u32 %s, %s, %s" % (v(aE1W), s(sA), v(aE1W)))
    a("s_mul_i32 %s, %s, 1040" % (s(sA), s(sW)))
    a("s_add_u32 %s, %s, %d" % (s(sA), s(sA), L_E1))
    a("v_lshl_add_u32 %s, %s, 3, %s" % (v(aE1R), v(vL), s(sA)))
    a("s_lshl_b32 %s, %s, 6" % (s(sA), s(sW)))
    a("s_add_u32 %s, %s, %d" % (s(sA), s(sA), L_E2))
    a("v_mul_u32_u24 %s, 1032, %s" % (v(aE2W), v(vN)))
    a("v_lshl_add_u32 %s, %s, 3, %s" % (v(aE2W), v(vG), v(aE2W)))
    a("v_add_u32 %s, %s, %s" % (v(aE2W), s(sA), v(aE2W)))
    a("s_mul_i32 %s, %s, 1032" % (s(sA), s(sW)))
    a("s_add_u32 %s, %s, %d" % (s(sA), s(sA), L_E2))
    a("v_lshl_add_u32 %s, %s, 3, %s" % (v(aE2R), v(vL), s(sA)))
    a("s_lshl_b32 %s, %s, 2" % (s(sA), s(sW)))
    a("s_add_u32 %s, %s, %d" % (s(sA), s(sA), L_RED))
    a("v_mul_u32_u24 %s, 96, %s" % (v(aRW), v(vN)))
    a("v_add_u32 %s, %s, %s" % (v(aRW), s(sA), v(aRW)))
    a("v_and_b32 %s, 31, %s" % (v(T8), v(vL)))
    a("v_mul_u32_u24 %s, 48, %s" % (v(aRR), v(T8)))
    a("v_add_u32 %s, %d, %s" % (v(aRR), L_RED, v(aRR)))
    a.c("W piece: task (q, g, n>>2), column c*2+cc, kk = n&3")
    a("v_lshrrev_b32 %s, 2, %s" % (v(T8), v(vL)))
    a("v_mul_u32_u24 %s, 20480, %s" % (v(aW), v(T8)))
    a("v_and_b32 %s, 3, %s" % (v(T8), v(vL)))
    a("v_lshl_add_u32 %s, %s, 4, %s" % (v(aW), v(T8), v(aW)))
    a("s_and_b32 %s, %s, 7" % (s(sA), s(sW)))
    a("s_mul_i32 %s, %s, %d" % (s(sWOFF), s(sA), 16 * 20480))
    a("s_lshr_b32 %s, %s, 3" % (s(sA), s(sW)))
    a("s_lshl_b32 %s, %s, 1" % (s(sB), s(sC)))
    a("s_add_u32 %s, %s, %s" % (s(sA), s(sA), s(sB)))
    a("s_lshl_b32 %s, %s, 6" % (s(sA), s(sA)))
    a("s_add_u32 %s, %s, %s" % (s(sWOFF), s(sWOFF), s(sA)))
    a("s_add_u32 %s, %s, 0x%x" % (s(sWOFF), s(sWOFF), WS_W))

    a("s_and_b32 %s, %s, 3" % (s(sD), s(sW)))
    a("s_mul_i32 %s, %s, 1280" % (s(sA), s(sD)))
    a("v_lshl_add_u32 %s, %s, 3, %s" % (v(DR), v(vL), s(sA)))
    a("v_and_b32 %s, 31, %s" % (v(DR + 1), v(vL)))
    a("v_lshl_add_u32 %s, %s, 3, %s" % (v(DR + 1), v(DR + 1), s(sA)))
    a("s_waitcnt lgkmcnt(0)")
    a("s_not_b32 %s, %s" % (s(sT), s(sT)))
    a("v_mov_b32 %s, %s" % (v(vT), s(sT)))
    a("s_waitcnt vmcnt(2)")
    a("s_barrier")
    stamp()
    a("s_cmp_ge_u32 %s, 12" % s(sW))
    a("s_cbranch_scc1 L_var")
    A1, A2 = 28, 34
    for r, dst in ((0, A1), (5120, A2)):
        a("ds_read_b64_tr_b16 %s, %s offset:%d" % (v(dst, 2), v(DR), r))
        a("ds_read_b64_tr_b16 %s, %s offset:%d" % (v(dst + 2, 2), v(DR), r + 512))
        a("ds_read_b64_tr_b16 %s, %s offset:%d" % (v(dst + 4, 2), v(DR + 1), r + 1024))
    a.c("T address: t*528 + row*64 + part*32 + g*8")
    a("s_lshr_b32 %s, %s, 2" % (s(sA), s(sW)))
    a("s_mul_i32 %s, %s, %d" % (s(sA), s(sA), 8 * 528))
    a("s_lshl_b32 %s, %s, 7" % (s(sB), s(sD)))
    a("s_add_u32 %s, %s, %s" % (s(sA), s(sA), s(sB)))
    a("s_add_u32 %s, %s, %d" % (s(sA), s(sA), L_TB))
    a("v_lshrrev_b32 %s, 1, %s" % (v(SV), v(vN)))
    a("v_mul_u32_u24 %s, 528, %s" % (v(SV), v(SV)))
    a("v_and_b32 %s, 1, %s" % (v(SV + 1), v(vN)))
    a("v_lshl_add_u32 %s, %s, 5, %s" % (v(SV), v(SV + 1), v(SV)))
    a("v_lshl_add_u32 %s, %s, 3, %s" % (v(SV), v(vG), v(SV)))
    a("v_add_u32 %s, %s, %s" % (v(SV), s(sA), v(SV)))
    a("s_waitcnt lgkmcnt(0)")
    for src, d in ((A1, DR), (A2, DI)):
        a("v_mfma_f32_16x16x32_bf16 %s, %s, %s, 0" % (v(d, 4), v(src, 4), v(S1B, 4)))
        a("v_mfma_f32_16x16x32_bf16 %s, %s, %s, %s" % (v(d, 4), v(src + 2, 4), v(S1B + 4, 4), v(d, 4)))
    pack(DR, DI)
    a("ds_write_b64 %s, %s" % (v(SV), v(OP, 2)))
    a("ds_write_b64 %s, %s offset:64" % (v(SV), v(OP + 2, 2)))
    a("s_branch L_s1done")
    a("L_var:")
    a.c("row statistics: one row per half wave")
    a("v_lshrrev_b32 %s, 5, %s" % (v(DR + 2), v(vL)))
    a("v_mul_u32_u24 %s, 5120, %s" % (v(DR + 3), v(DR + 2)))
    a("v_add_u32 %s, %s, %s" % (v(DR + 1), v(DR + 1), v(DR + 3)))
    for e in range(5):
        a("ds_read_b64 %s, %s offset:%d" % (v(28 + 2 * e, 2), v(DR + 1), 256 * e))
    a("v_mov_b32 %s, 0" % v(TM))
    a("v_mov_b32 %s, 0" % v(TM + 1))
    a("v_mov_b32 %s, 0x3f803f80" % v(TM + 2))
    a("s_lshl_b32 %s, %s, 3" % (s(sA), s(sD)))
    a("s_add_u32 %s, %s, %d" % (s(sA), s(sA), L_S0))
    a("v_lshl_add_u32 %s, %s, 2, %s" % (v(DR + 2), v(DR + 2), s(sA)))
    a("s_waitcnt lgkmcnt(0)")
    for e in range(10):
        a("v_dot2c_f32_bf16 %s, %s, %s" % (v(TM), v(28 + e), v(28 + e)))
        a("v_dot2c_f32_bf16 %s, %s, %s" % (v(TM + 1), v(28 + e), v(TM + 2)))
    for sh in (1, 2, 4, 8):
        for r in (TM, TM + 1):
            a("v_add_f32_dpp %s, %s, %s row_ror:%d row_mask:0xf bank_mask:0xf" % (v(r), v(r), v(r), sh))
    a("v_mov_b32 %s, %s" % (v(TM + 2), v(TM)))
    a("v_mov_b32 %s, %s" % (v(TM + 3), v(TM + 1)))
    a("v_permlane16_swap_b32 %s, %s" % (v(TM), v(TM + 2)))
    a("v_permlane16_swap_b32 %s, %s" % (v(TM + 1), v(TM + 3)))
    a("v_add_f32 %s, %s, %s" % (v(TM), v(TM), v(TM + 2)))
    a("v_add_f32 %s, %s, %s" % (v(TM + 1), v(TM + 1), v(TM + 3)))
    a("v_mul_f32 %s, %s, %s" % (v(TM), fhex(2048.0 ** 2 / 640), v(TM)))
    a("v_mul_f32 %s, %s, %s" % (v(TM + 1), fhex(2048.0 / 640), v(TM + 1)))
    a("v_fma_f32 %s, -%s, %s, %s" % (v(TM), v(TM + 1), v(TM + 1), v(TM)))
    a("v_max_f32 %s, 0, %s" % (v(TM), v(TM)))
    a("v_add_f32 %s, %s, %s" % (v(TM), fhex(1e-5 * 2048.0 ** 2), v(TM)))
    a("v_rsq_f32 %s, %s" % (v(TM), v(TM)))
    a("s_movk_i32 %s, 0xff" % s(sA))
    a("v_bfi_b32 %s, %s, %s, %s" % (v(TM), s(sA), v(vT), v(TM)))
    a("ds_write_b32 %s, %s" % (v(DR + 2), v(TM)))
    a("L_s1done:")
    barrier()
    a("s_cmp_ge_u32 %s, 10" % s(sW))
    a("s_cbranch_scc1 L_s2other")
    a.c("stage 2: two tiles per wave")
    a("v_lshrrev_b32 %s, 1, %s" % (v(SV), v(vG)))
    a("v_xor_b32 %s, %s, %s" % (v(SV), v(SV), v(vN)))
    a("v_lshlrev_b32 %s, 5, %s" % (v(SV), v(SV)))
    a("v_and_b32 %s, 16, %s" % (v(SV + 1), v(vL)))
    a("s_mul_i32 %s, %s, 1056" % (s(sA), s(sW)))
    a("s_add_u32 %s, %s, %d" % (s(sA), s(sA), L_TB))
    a("v_add3_u32 %s, %s, %s, %s" % (v(SV), v(SV), v(SV + 1), s(sA)))
    a("ds_read_b128 %s, %s" % (v(28, 4), v(SV)))
    a("ds_read_b128 %s, %s offset:528" % (v(32, 4), v(SV)))
    a("v_bitop3_b32 %s, %s, %s, %s %s" % (v(SV + 1), v(vT), v(vM1), v(mS), B_ANDX))
    a("s_mul_i32 %s, %s, 10240" % (s(sA), s(sRHO)))
    a("s_lshl_b32 %s, %s, 10" % (s(sB), s(sW)))
    a("s_add_u32 %s, %s, %s" % (s(sA), s(sA), s(sB)))
    a("s_add_u32 %s, %s, 0x%x" % (s(sA), s(sA), WS_X))
    a("v_lshlrev_b32 %s, 2, %s" % (v(SV), v(vL)))
    a("s_waitcnt lgkmcnt(0)")
    for e in range(8):
        a("v_xor_b32 %s, %s, %s" % (v(28 + e), v(mS), v(28 + e)))
    a("v_mfma_f32_16x16x32_bf16 %s, %s, %s, 0" % (v(DR, 4), v(M0A, 4), v(28, 4)))
    a("v_mfma_f32_16x16x32_bf16 %s, %s, %s, 0" % (v(DI, 4), v(M1, 4), v(32, 4)))
    a("s_cmp_lg_u32 %s, 0" % s(sW))
    a("s_cbranch_scc1 L_s2n")
    a("v_mfma_f32_16x16x32_bf16 %s, %s, %s, 0" % (v(TM, 4), v(M0B, 4), v(28, 4)))
    for e in range(4):
        a("v_cndmask_b32 %s, %s, %s, %s" % (v(DR + e), v(DR + e), v(TM + e), s(sM + 2, 2)))
    a("L_s2n:")
    for e in range(4):
        a("v_cvt_pk_bf16_f32 %s, %s, %s" % (v(OP + e), v(DR + e), v(DI + e)))
    for e in range(4):
        a("v_bitop3_b32 %s, %s, %s, %s %s" % (v(OP + e), v(OP + e), v(vM1), v(SV + 1), B_TAG))
        a("buffer_store_dword %s, %s, %s, %s offen offset:%d sc1" % (v(OP + e), v(SV), s(SWS, 4), s(sA), 256 * e))
    a("s_waitcnt vmcnt(4)")
    a("s_branch L_s2done")
    a("L_s2other:")
    a("s_waitcnt vmcnt(0)")
    a("s_cmp_lg_u32 %s, 10" % s(sW))
    a("s_cbranch_scc1 L_s2done")
    a.c("publish the eight layer-0 scales, one copy per replica")
    a("v_and_b32 %s, 7, %s" % (v(SV), v(vL)))
    a("v_lshlrev_b32 %s, 2, %s" % (v(SV), v(SV)))
    a("ds_read_b32 %s, %s offset:%d" % (v(TM), v(SV), L_S0))
    a("v_lshrrev_b32 %s, 3, %s" % (v(SV + 1), v(vL)))
    a("v_lshl_add_u32 %s, %s, 13, %s" % (v(SV), v(SV + 1), v(SV)))
    a("s_lshl_b32 %s, %s, 5" % (s(sA), s(sRHO)))
    a("s_add_u32 %s, %s, 0x%x" % (s(sA), s(sA), WS_S))
    a("s_waitcnt lgkmcnt(0)")
    a("buffer_store_dword %s, %s, %s, %s offen sc1" % (v(TM), v(SV), s(SWS, 4), s(sA)))
    a("L_s2done:")
    stamp()
    a("s_barrier")

    a.c("round R: tp = R>>1, k2 = 4*((l>>3)&3) + 2*(R&1) + (l>>5), cc = (l>>2)&1, kk = l&3")
    a("s_mov_b32 %s, %s" % (s(sD), s(sW)))
    a("v_and_b32 %s, %s, %s" % (v(SV + 1), v(vT), v(vM1)))
    a("L_wt:")
    K2, TT, KK = DR, DR + 1, DR + 2
    a("v_bfe_u32 %s, %s, 3, 2" % (v(K2), v(vL)))
    a("v_lshrrev_b32 %s, 5, %s" % (v(TT), v(vL)))
    a("v_lshl_add_u32 %s, %s, 2, %s" % (v(K2), v(K2), v(TT)))
    a("s_and_b32 %s, %s, 1" % (s(sA), s(sD)))
    a("s_lshl_b32 %s, %s, 1" % (s(sA), s(sA)))
    a("v_add_u32 %s, %s, %s" % (v(K2), s(sA), v(K2)))
    a("s_and_b32 %s, %s, 0xfe" % (s(sA), s(sD)))
    a("v_bfe_u32 %s, %s, 2, 1" % (v(TT), v(vL)))
    a("v_add_u32 %s, %s, %s" % (v(TT), s(sA), v(TT)))
    a("v_cmp_le_u32 %s, 8, %s" % (s(sA, 2), v(K2)))
    a("v_cmp_eq_u32 vcc, 0, %s" % v(TT))
    a("s_and_b64 vcc, vcc, %s" % s(sA, 2))
    a("v_cndmask_b32 %s, %s, 20, vcc" % (v(TT), v(TT)))
    a("v_mad_u32_u24 %s, %s, 40, %s" % (v(KK), v(K2), v(TT)))
    a("v_sub_u32 %s, 640, %s" % (v(TT), v(KK)))
    a("v_cndmask_b32 %s, %s, %s, %s" % (v(KK), v(KK), v(TT), s(sA, 2)))
    a("v_cmp_eq_u32 vcc, 0, %s" % v(KK))
    a("v_mov_b32 %s, 320" % v(TT))
    a("v_cndmask_b32 %s, %s, %s, vcc" % (v(KK), v(KK), v(TT)))
    a("v_and_b32 %s, 3, %s" % (v(TT), v(vL)))
    a("v_mul_u32_u24 %s, 656, %s" % (v(TT), v(TT)))
    a("v_lshl_add_u32 %s, %s, 1, %s" % (v(KK), v(KK), v(TT)))
    a("s_bfe_u32 %s, %s, 0x30004" % (s(sA), s(sSIG)))
    a("s_lshl_b32 %s, %s, 1" % (s(sA), s(sA)))
    a("v_add_u32 %s, %s, %s" % (v(KK), s(sA), v(KK)))
    for arr in range(2):
        for i in range(4):
            a("ds_read_u16 %s, %s offset:%d" % (v(TM + 4 * arr + i), v(KK), L_WI + (arr * 16 + 4 * i) * 656))
    a("s_mul_i32 %s, %s, 20480" % (s(sA), s(sSIG)))
    a("s_lshl_b32 %s, %s, 10" % (s(sB), s(sD)))
    a("s_add_u32 %s, %s, %s" % (s(sA), s(sA), s(sB)))
    a("s_add_u32 %s, %s, 0x%x" % (s(sA), s(sA), WS_W))
    a("v_lshlrev_b32 %s, 4, %s" % (v(SV), v(vL)))
    a("s_waitcnt lgkmcnt(0)")
    for e in range(4):
        a("v_lshl_or_b32 %s, %s, 16, %s" % (v(OP + e), v(TM + 2 * e + 1), v(TM + 2 * e)))
    for e in range(4):
        a("v_bitop3_b32 %s, %s, %s, %s %s" % (v(OP + e), v(OP + e), v(vM1), v(SV + 1), B_TAG))
    a("buffer_store_dwordx4 %s, %s, %s, %s offen sc1" % (v(OP, 4), v(SV), s(SWS, 4), s(sA)))
    a("s_add_u32 %s, %s, 16" % (s(sD), s(sD)))
    a("s_cmp_lt_u32 %s, 20" % s(sD))
    a("s_cbranch_scc1 L_wt")
    stamp()
    a("s_mov_b32 %s, 0" % s(sL))
    a("s_cmp_ge_u32 %s, 20" % s(sRANK))
    a("s_cbranch_scc1 L_final")

    a.c("zero the two pad columns of the reduction table")
    a("v_mov_b32 %s, 0" % v(TM))
    a("v_mov_b32 %s, 0" % v(TM + 1))
    a("ds_write_b64 %s, %s offset:40" % (v(aRR), v(TM, 2)))
    a("L_layer:")
    a("buffer_load_dwordx2 %s, %s, %s, %s offen sc1" % (v(SV, 2), v(aS), s(SWS, 4), s(sSOFF)))
    a("s_waitcnt vmcnt(0)")
    a("v_bitop3_b32 %s, %s, %s, %s %s" % (v(TM), v(SV), v(SV + 1), v(vT), B_MIS2))
    a("v_and_b32 %s, 0xff, %s" % (v(TM), v(TM)))
    a("v_cmp_ne_u32 vcc, 0, %s" % v(TM))
    a("s_cbranch_vccz L_sok")
    retry("L_layer")
    a("L_sok:")
    a("s_cmp_lg_u32 %s, 0" % s(sL))
    a("s_cbranch_scc1 L_havex")
    a.c("first layer: gather this workgroup's two columns")
    a("v_lshrrev_b32 %s, 2, v0" % v(DR))
    a("v_mul_u32_u24 %s, 10240, %s" % (v(DR), v(DR)))
    a("v_and_b32 %s, 3, v0" % v(DR + 1))
    a("v_lshl_add_u32 %s, %s, 4, %s" % (v(DR), v(DR + 1), v(DR)))
    a("s_lshl_b32 %s, %s, 6" % (s(sD), s(sC)))
    a("s_add_u32 %s, %s, 0x%x" % (s(sD), s(sD), WS_X))
    a("L_xpoll:")
    a("buffer_load_dwordx4 %s, %s, %s, %s offen sc1" % (v(OP, 4), v(DR), s(SWS, 4), s(sD)))
    a("s_waitcnt vmcnt(0)")
    check4(OP, v(vM1), "L_xok")
    retry("L_xpoll")
    a("L_xok:")
    a("s_mov_b32 %s, 0xfffe0000" % s(sA))
    a("s_mov_b32 %s, 0xfffeffff" % s(sB))
    a("v_mov_b32 %s, 0x8000" % v(TM + 6))
    for e in range(4):
        unpack(OP + e, X + e, X + 4 + e)
    for e in range(8):
        a("v_mov_b32 %s, %s" % (v(XO + e), v(X + e)))
    stamp()
    a("L_havex:")
    a("s_cmp_ge_u32 %s, 2" % s(sL))
    a("s_cbranch_scc1 L_now")
    a("buffer_load_dwordx4 %s, %s, %s, %s offen sc1" % (v(WL, 4), v(aW), s(SWS, 4), s(sWOFF)))
    a("L_now:")
    a("v_and_b32 %s, 0xffffff00, %s" % (v(SV), v(SV)))
    a("v_and_b32 %s, 0xffffff00, %s" % (v(SV + 1), v(SV + 1)))
    for e in range(8):
        a("v_mul_f32 %s, %s, %s" % (v(TM + e), v(SV + ((e >> 1) & 1)), v(X + e)))
    pack(TM, TM + 4)
    a("v_mfma_f32_16x16x16_bf16 %s, %s, %s, 0" % (v(DR, 4), v(OP, 2), v(MA, 2)))
    a("v_mfma_f32_16x16x16_bf16 %s, %s, %s, 0" % (v(DI, 4), v(OP + 2, 2), v(MA, 2)))
    pack(DR, DI)
    a("ds_write_b64 %s, %s" % (v(aE1W), v(OP, 2)))
    a("ds_write_b64 %s, %s offset:%d" % (v(aE1W), v(OP + 2, 2), 16 * 520))
    barrier()
    a("ds_read_b64_tr_b16 %s, %s" % (v(OP, 2), v(aE1R)))
    a("ds_read_b64_tr_b16 %s, %s offset:520" % (v(OP + 2, 2), v(aE1R)))
    a("s_waitcnt lgkmcnt(0)")
    radix16(True, False)
    cmul(TF, TF + 4, -1)
    pack(TM, TM + 4)
    radix16(False, False)
    a("s_cmp_ge_u32 %s, 2" % s(sL))
    a("s_cbranch_scc1 L_wready")
    a("L_wpoll:")
    a("s_waitcnt vmcnt(0)")
    check4(WL, v(vM1), "L_wok")
    a("buffer_load_dwordx4 %s, %s, %s, %s offen sc1" % (v(WL, 4), v(aW), s(SWS, 4), s(sWOFF)))
    retry("L_wpoll")
    a("s_waitcnt vmcnt(0)")
    a("L_wok:")
    a("s_mov_b32 %s, 0xfffe0000" % s(sA))
    a("s_mov_b32 %s, 0xfffeffff" % s(sB))
    a("v_mov_b32 %s, 0x8000" % v(TM + 6))
    for e in range(4):
        unpack(WL + e, WC + 2 * e, WC + 2 * e + 1)
    a("s_add_u32 %s, %s, %d" % (s(sWOFF), s(sWOFF), 128 * 20480))
    a("L_wready:")
    cmul(WC, WC + 4, +1)
    pack(TM + 4, TM)
    radix16(True, True)
    cmul(TI, TI + 4, +1)
    pack(TM + 4, TM)
    radix16(True, True)
    pack(DR, DI)
    a("ds_write_b64 %s, %s" % (v(aE2W), v(OP, 2)))
    a("ds_write_b64 %s, %s offset:32" % (v(aE2W), v(OP + 2, 2)))
    barrier()
    a("ds_read_b64_tr_b16 %s, %s" % (v(OP, 2), v(aE2R)))
    a("ds_read_b64_tr_b16 %s, %s offset:512" % (v(OP + 2, 2), v(aE2R)))
    a("s_waitcnt lgkmcnt(0)")
    a("v_mfma_f32_16x16x16_bf16 %s, %s, %s, %s" % (v(X, 4), v(MI0, 2), v(OP, 2), v(X, 4)))
    a("v_mfma_f32_16x16x16_bf16 %s, %s, %s, %s" % (v(X + 4, 4), v(MI1, 2), v(OP + 2, 2), v(X + 4, 4)))
    a("s_cmp_eq_u32 %s, 3" % s(sL))
    a("s_cbranch_scc1 L_delta")
    a.c("partial sums of squares for two rows, sign bits carry the tag")
    a("s_mov_b32 %s, 0x80008000" % s(sA))
    a("v_mul_f32 %s, %s, %s" % (v(TM), v(X), v(X)))
    a("v_mul_f32 %s, %s, %s" % (v(TM + 1), v(X + 2), v(X + 2)))
    for e in (1, 4, 5):
        a("v_fmac_f32 %s, %s, %s" % (v(TM), v(X + e), v(X + e)))
        a("v_fmac_f32 %s, %s, %s" % (v(TM + 1), v(X + e + 2), v(X + e + 2)))
    a("v_cvt_pk_bf16_f32 %s, %s, %s" % (v(TM), v(TM), v(TM + 1)))
    a("v_bfi_b32 %s, %s, %s, %s" % (v(TM), s(sA), v(vT), v(TM)))
    a("buffer_store_dword %s, %s, %s, %s offen sc1" % (v(TM), v(aP), s(SWS, 4), s(sPOFF)))
    if stamps:
        a("s_cmp_lg_u32 %s, 0" % s(sL))
        a("s_cbranch_scc1 L_nst1")
        stamp()
        a("L_nst1:")
    for e in range(8):
        a("v_swap_b32 %s, %s" % (v(WC + e), v(WO + e)))
    a.c("selector matrix: row 0 sums low halves, row 1 high halves")
    a("v_lshlrev_b32 %s, 4, %s" % (v(DI), v(vN)))
    a("v_mov_b32 %s, 0x3f80" % v(DI + 1))
    a("v_lshlrev_b32 %s, %s, %s" % (v(DI + 1), v(DI), v(DI + 1)))
    a("v_cmp_gt_u32 vcc, 2, %s" % v(vN))
    a("v_mov_b32 %s, %s" % (v(SV), s(sA)))
    a("v_cndmask_b32 %s, 0, %s, vcc" % (v(DI), v(DI + 1)))
    a("v_mov_b32 %s, %s" % (v(DI + 1), v(DI)))
    a("v_mov_b32 %s, %s" % (v(DI + 2), v(DI)))
    a("v_mov_b32 %s, %s" % (v(DI + 3), v(DI)))
    a("s_waitcnt vmcnt(0)")
    a("s_barrier")
    a("s_cmp_ge_u32 %s, 10" % s(sW))
    a("s_cbranch_scc1 L_rskip")
    a("L_ppoll:")
    for e in range(4):
        a("buffer_load_dword %s, %s, %s, %s offen offset:%d sc1" % (v(OP + e), v(aG), s(SWS, 4), s(sPG), 256 * e))
    a("s_waitcnt vmcnt(0)")
    check4(OP, v(SV), "L_pok")
    retry("L_ppoll")
    a("L_pok:")
    a("v_mfma_f32_16x16x32_bf16 %s, %s, %s, 0" % (v(DR, 4), v(DI, 4), v(OP, 4)))
    a("s_bfm_b64 exec, 16, 0")
    a("ds_write2_b32 %s, %s, %s offset0:0 offset1:12" % (v(aRW), v(DR), v(DR + 1)))
    a("s_mov_b64 exec, -1")
    a("L_rskip:")
    barrier()
    a("s_cmp_ge_u32 %s, 4" % s(sW))
    a("s_cbranch_scc1 L_sskip")
    a("ds_read_b128 %s, %s" % (v(DR, 4), v(aRR)))
    a("ds_read_b128 %s, %s offset:16" % (v(DI, 4), v(aRR)))
    a("ds_read_b64 %s, %s offset:32" % (v(TM, 2), v(aRR)))
    a("v_and_b32 %s, 31, %s" % (v(SV), v(vL)))
    a("v_lshlrev_b32 %s, 2, %s" % (v(SV), v(SV)))
    a("v_lshrrev_b32 %s, 5, %s" % (v(SV + 1), v(vL)))
    a("v_lshl_add_u32 %s, %s, 13, %s" % (v(SV), v(SV + 1), v(SV)))
    a("v_mov_b32 %s, %s" % (v(TM + 2), fhex(1e-5 * 2048.0 ** 2)))
    a("s_mov_b32 %s, %s" % (s(sB), fhex(2 * 2048.0 ** 2 / 640.0 ** 2)))
    a("s_movk_i32 %s, 0xff" % s(sA))
    a("s_waitcnt lgkmcnt(0)")
    for e in range(4):
        a("v_add_f32 %s, %s, %s" % (v(DR + e), v(DR + e), v(DI + e)))
    a("v_add_f32 %s, %s, %s" % (v(TM), v(TM), v(TM + 1)))
    a("v_add_f32 %s, %s, %s" % (v(DR), v(DR), v(DR + 1)))
    a("v_add_f32 %s, %s, %s" % (v(DR + 2), v(DR + 2), v(DR + 3)))
    a("v_add_f32 %s, %s, %s" % (v(TM), v(TM), v(DR)))
    a("v_add_f32 %s, %s, %s" % (v(TM), v(TM), v(DR + 2)))
    a("v_fma_f32 %s, |%s|, %s, %s" % (v(TM), v(TM), s(sB), v(TM + 2)))
    a("v_rsq_f32 %s, %s" % (v(TM), v(TM)))
    a("v_bfi_b32 %s, %s, %s, %s" % (v(TM), s(sA), v(vT), v(TM)))
    a("buffer_store_dword %s, %s, %s, %s offen sc1" % (v(TM), v(SV), s(SWS, 4), s(sSST)))
    a("s_waitcnt vmcnt(0)")
    a("L_sskip:")
    a("s_add_u32 %s, %s, 1" % (s(sL), s(sL)))
    a("s_add_u32 %s, %s, 0x20000" % (s(sSOFF), s(sSOFF)))
    a("s_add_u32 %s, %s, 0x20000" % (s(sSST), s(sSST)))
    a("s_add_u32 %s, %s, %d" % (s(sPOFF), s(sPOFF), P_SZ))
    a("s_add_u32 %s, %s, %d" % (s(sPG), s(sPG), P_SZ))
    a("s_barrier")
    a("s_branch L_layer")

    a("L_delta:")
    a("s_lshl_b32 %s, %s, 14" % (s(sA), s(sC)))
    a("s_add_u32 %s, %s, 0x%x" % (s(sA), s(sA), WS_D))
    a("v_lshlrev_b32 %s, 4, v0" % v(SV))
    a("v_and_b32 %s, %s, %s" % (v(SV + 1), v(vT), v(vM1)))
    for e in range(8):
        a("v_sub_f32 %s, %s, %s" % (v(TM + e), v(X + e), v(XO + e)))
    a("s_mov_b32 %s, 0x07060302" % s(sB))
    for e in range(8):
        a("v_add_u32 %s, 0x10000, %s" % (v(TM + e), v(TM + e)))
    for e in range(4):
        a("v_perm_b32 %s, %s, %s, %s" % (v(OP + e), v(TM + 4 + e), v(TM + e), s(sB)))
    for e in range(4):
        a("v_bitop3_b32 %s, %s, %s, %s %s" % (v(OP + e), v(OP + e), v(vM1), v(SV + 1), B_TAG))
    a("buffer_store_dwordx4 %s, %s, %s, %s offen sc1" % (v(OP, 4), v(SV), s(SWS, 4), s(sA)))
    stamp()

    a("L_final:")
    a.c("inverse stage-1 matrix: lane = d1, K = (t, part)")
    a("s_lshr_b32 %s, %s, 2" % (s(sA), s(sW)))
    a("s_lshl_b32 %s, %s, 4" % (s(sA), s(sA)))
    a("v_add_u32 %s, %s, %s" % (v(DI), s(sA), v(vN)))
    a("v_cvt_f32_u32 %s, %s" % (v(F), v(DI)))
    a("v_mul_f32 %s, %s, %s" % (v(F), fhex(1 / 40), v(F)))
    a("v_add_f32 %s, %s, %s" % (v(A0), v(vGF), v(vGF)))
    a("v_mul_f32 %s, %s, %s" % (v(AMP), v(F), v(A0)))
    a("v_add_f32 %s, %s, %s" % (v(A0), v(AMP), v(AMP)))
    C6, S6 = 8, 14
    for e in range(4):
        ang(C6 + e, F, e, A0)
    ang(C6 + 4, F, 16, AMP)
    ang(C6 + 5, F, 17, AMP)
    for e in range(6):
        a("v_sin_f32 %s, %s" % (v(S6 + e), v(C6 + e)))
    for e in range(6):
        a("v_cos_f32 %s, %s" % (v(C6 + e), v(C6 + e)))
    a("v_cndmask_b32 %s, -1.0, 1.0, %s" % (v(TM), s(sM + 2, 2)))
    a("v_cmp_eq_u32 vcc, 0, %s" % v(vG))
    a("v_cndmask_b32 %s, %s, %s, vcc" % (v(S6), v(S6), v(TM)))
    for e in range(6):
        a("v_cvt_pk_bf16_f32 %s, %s, -%s" % (v(S1I + e), v(C6 + e), v(S6 + e)))
    a("v_cndmask_b32 %s, %s, 0, %s" % (v(S1I + 6), v(S1I + 4), s(sM, 2)))
    a("v_cndmask_b32 %s, %s, 0, %s" % (v(S1I + 7), v(S1I + 5), s(sM, 2)))
    a("v_mov_b32 %s, 0" % v(S1I + 4))
    a("v_mov_b32 %s, 0" % v(S1I + 5))
    a("s_cmp_ge_u32 %s, 10" % s(sW))
    a("s_cbranch_scc1 L_fcdone")
    a.c("inverse stage-2 matrices: lane = d2, K = (k2, tile)")
    a("v_mul_f32 %s, %s, %s" % (v(F), fhex(1 / 640), v(vNF)))
    a("s_lshl_b32 %s, %s, 1" % (s(sA), s(sW)))
    a("v_cvt_f32_u32 %s, %s" % (v(A0), s(sA)))
    a("v_fmamk_f32 %s, %s, %s, %s" % (v(A0), v(vGF), fhex(160), v(A0)))
    a("v_mul_f32 %s, %s, %s" % (v(A0), v(F), v(A0)))
    C8, S8 = 8, 16
    for e in range(4):
        ang(C8 + 4 + e, F, 40 * e + 1, A0)
    a("v_mov_b32 %s, 0xfffefffe" % v(mP))
    a("v_mov_b32 %s, 0xfffefffe" % v(mQ))
    a("v_mov_b32 %s, 1.0" % v(AMP))
    a("v_mov_b32 %s, %s" % (v(C8), v(A0)))
    a("s_cmp_lg_u32 %s, 0" % s(sW))
    a("s_cbranch_scc1 L_fcn")
    a("v_mov_b32 %s, 0x3e800000" % v(TM))
    a("v_fmamk_f32 %s, %s, %s, %s" % (v(TM), v(F), fhex(20), v(TM)))
    a("v_cndmask_b32 %s, 0, %s, %s" % (v(TM), v(TM), s(sM, 2)))
    a("v_add_f32 %s, %s, %s" % (v(A0), v(A0), v(TM)))
    a("v_mul_f32 %s, 0.5, %s" % (v(TM), v(vNF)))
    a("v_cndmask_b32 %s, %s, %s, vcc" % (v(C8), v(A0), v(TM)))
    a("v_mov_b32 %s, %s" % (v(TM), fhex(0.5 ** 0.5)))
    a("v_cndmask_b32 %s, %s, %s, vcc" % (v(AMP), v(AMP), v(TM)))
    a("s_xor_b64 vcc, %s, %s" % (s(sM, 2), s(sM + 2, 2)))
    a("v_mov_b32 %s, 0xfffe0000" % v(TM))
    a("v_cndmask_b32 %s, %s, %s, vcc" % (v(mQ), v(TM), v(mQ)))
    a("v_cndmask_b32 %s, %s, %s, vcc" % (v(mP), v(mP), v(TM)))
    a("L_fcn:")
    for e in range(1, 4):
        ang(C8 + e, F, 40 * e, A0)
    for e in range(8):
        a("v_sin_f32 %s, %s" % (v(S8 + e), v(C8 + e)))
    for e in range(8):
        a("v_cos_f32 %s, %s" % (v(C8 + e), v(C8 + e)))
    a("v_mul_f32 %s, %s, %s" % (v(C8), v(AMP), v(C8)))
    for e in range(4):
        a("v_cvt_pk_bf16_f32 %s, %s, 0" % (v(PQ + e), v(C8 + e)))
        a("v_cvt_pk_bf16_f32 %s, %s, 0" % (v(PQ + 4 + e), v(S8 + e)))
        a("v_cvt_pk_bf16_f32 %s, 0, %s" % (v(PQ + 8 + e), v(C8 + 4 + e)))
        a("v_cvt_pk_bf16_f32 %s, 0, %s" % (v(PQ + 12 + e), v(S8 + 4 + e)))
    a("L_fcdone:")
    a.c("message c = tp*16 + i*4 + g, dword n")
    a("v_lshlrev_b32 %s, 14, %s" % (v(SV), v(vG)))
    a("v_lshl_add_u32 %s, %s, 2, %s" % (v(SV), v(vN), v(SV)))
    a("s_lshl_b32 %s, %s, 6" % (s(sE), s(sRHO)))
    a("s_add_u32 %s, %s, 0x%x" % (s(sE), s(sE), WS_D))
    a("s_cmp_lt_u32 %s, 20" % s(sRANK))
    a("s_cbranch_scc1 L_fgo")
    a("s_cmp_lg_u32 %s, 0" % s(sW))
    a("s_cbranch_scc1 L_fgo")
    a.c("workgroups without columns watch a single message until the last layer is out")
    a("s_and_b32 %s, %s, 127" % (s(sA), s(sRHO)))
    a("s_lshl_b32 %s, %s, 14" % (s(sA), s(sA)))
    a("s_add_u32 %s, %s, %s" % (s(sA), s(sA), s(sE)))
    a("v_lshlrev_b32 %s, 2, %s" % (v(SV + 1), v(vN)))
    a("L_canary:")
    a("buffer_load_dword %s, %s, %s, %s offen sc1" % (v(TM), v(SV + 1), s(SWS, 4), s(sA)))
    a("s_waitcnt vmcnt(0)")
    a("v_bitop3_b32 %s, %s, %s, %s %s" % (v(TM), v(TM), v(vT), v(vM1), bitop(lambda d, t, m: (d ^ t) & m)))
    a("v_cmp_ne_u32 vcc, 0, %s" % v(TM))
    a("s_cbranch_vccz L_fgo")
    retry("L_canary")
    a("L_fgo:")
    a("s_waitcnt vmcnt(0)")
    a("s_barrier")
    stamp()
    a("s_cmp_ge_u32 %s, 10" % s(sW))
    a("s_cbranch_scc1 L_f2done")
    a("s_lshl_b32 %s, %s, 18" % (s(sA), s(sW)))
    a("s_add_u32 %s, %s, %s" % (s(sA), s(sA), s(sE)))
    a("s_add_u32 %s, %s, 0x10000" % (s(sB), s(sA)))
    a("s_add_u32 %s, %s, 0x20000" % (s(sD), s(sA)))
    a("s_add_u32 %s, %s, 0x30000" % (s(sE), s(sA)))
    a("L_dpoll:")
    for e, so in enumerate((sA, sB, sD, sE)):
        a("buffer_load_dword %s, %s, %s, %s offen sc1" % (v(OP + e), v(SV), s(SWS, 4), s(so)))
    a("s_waitcnt vmcnt(0)")
    check4(OP, v(vM1), "L_dok")
    retry("L_dpoll")
    a("L_dok:")
    for e in range(4):
        a("v_bitop3_b32 %s, %s, %s, %s %s" % (v(TM + e), v(OP + e), v(mP), v(mS), B_ANDX))
    for e in range(4):
        a("v_bitop3_b32 %s, %s, %s, %s %s" % (v(TM + 4 + e), v(OP + e), v(mQ), v(mS), B_ANDX))
    P0, Q0, P1, Q1 = 8, 12, 16, 20
    a("v_mfma_f32_16x16x32_bf16 %s, %s, %s, 0" % (v(P0, 4), v(TM, 4), v(PQ, 4)))
    a("v_mfma_f32_16x16x32_bf16 %s, %s, %s, 0" % (v(Q0, 4), v(TM + 4, 4), v(PQ + 4, 4)))
    a("v_mfma_f32_16x16x32_bf16 %s, %s, %s, 0" % (v(P1, 4), v(TM, 4), v(PQ + 8, 4)))
    a("v_mfma_f32_16x16x32_bf16 %s, %s, %s, 0" % (v(Q1, 4), v(TM + 4, 4), v(PQ + 12, 4)))
    a.c("U address: row*1280 + d2*80 + tp*8, rows 2g and 2g+1")
    a("v_mul_u32_u24 %s, 80, %s" % (v(SV), v(vN)))
    a("v_mul_u32_u24 %s, 2560, %s" % (v(SV + 1), v(vG)))
    a("s_lshl_b32 %s, %s, 3" % (s(sA), s(sW)))
    a("s_add_u32 %s, %s, %d" % (s(sA), s(sA), L_TB))
    a("v_add3_u32 %s, %s, %s, %s" % (v(SV), v(SV), v(SV + 1), s(sA)))
    for k, (p, q) in enumerate(((P0, Q0), (P1, Q1))):
        for r in range(2):
            a("v_sub_f32 %s, %s, %s" % (v(p + 2 * r), v(p + 2 * r), v(q + 2 * r + 1)))
            a("v_add_f32 %s, %s, %s" % (v(p + 2 * r + 1), v(p + 2 * r + 1), v(q + 2 * r)))
        for r in range(2):
            a("v_cvt_pk_bf16_f32 %s, %s, %s" % (v(OP + 2 * r + k), v(p + 2 * r), v(p + 2 * r + 1)))
    a("ds_write_b64 %s, %s" % (v(SV), v(OP, 2)))
    a("ds_write_b64 %s, %s offset:1280" % (v(SV), v(OP + 2, 2)))
    a("L_f2done:")
    barrier()
    stamp()
    a("s_cmp_ge_u32 %s, 12" % s(sW))
    a("s_cbranch_scc1 L_fin")
    a("s_and_b32 %s, %s, 3" % (s(sD), s(sW)))
    a("s_mul_i32 %s, %s, 2560" % (s(sA), s(sD)))
    a("s_add_u32 %s, %s, %d" % (s(sA), s(sA), L_TB))
    a("v_mul_u32_u24 %s, 80, %s" % (v(SV), v(vN)))
    a("v_add_u32 %s, %s, %s" % (v(SV), s(sA), v(SV)))
    a("v_and_b32 %s, 1, %s" % (v(SV + 1), v(vG)))
    a("v_lshl_add_u32 %s, %s, 3, %s" % (v(SV + 1), v(SV + 1), v(SV)))
    a("v_lshl_add_u32 %s, %s, 4, %s" % (v(SV), v(vG), v(SV)))
    for r, dst in ((0, 8), (1280, 16)):
        a("ds_read_b128 %s, %s offset:%d" % (v(dst, 4), v(SV), r))
        a("ds_read_b64 %s, %s offset:%d" % (v(dst + 4, 2), v(SV + 1), r + 64))
    a.c("x / out offset inside the row: d1*32 + g*8")
    a("s_lshr_b32 %s, %s, 2" % (s(sA), s(sW)))
    a("s_lshl_b32 %s, %s, 4" % (s(sA), s(sA)))
    a("v_add_u32 %s, %s, %s" % (v(24), s(sA), v(vN)))
    a("v_cmp_gt_u32 vcc, 40, %s" % v(24))
    a("v_min_u32 %s, 39, %s" % (v(24), v(24)))
    a("v_lshlrev_b32 %s, 5, %s" % (v(24), v(24)))
    a("v_lshl_add_u32 %s, %s, 3, %s" % (v(24), v(vG), v(24)))
    a("s_mul_i32 %s, %s, 1280" % (s(sA), s(sD)))
    a("v_add_u32 %s, %s, %s" % (v(24), s(sA), v(24)))
    a("ds_read_b64 %s, %s" % (v(26, 2), v(24)))
    a("ds_read_b64 %s, %s offset:5120" % (v(28, 2), v(24)))
    a("s_add_u32 %s, %s, %d" % (s(sB), s(sROWB), 256 * 1280))
    a("s_mov_b32 %s, %s" % (s(sA), fhex(1 / 320)))
    a("s_waitcnt lgkmcnt(0)")
    for src, d in ((8, DR), (16, DI)):
        a("v_mfma_f32_16x16x32_bf16 %s, %s, %s, 0" % (v(d, 4), v(src, 4), v(S1I, 4)))
        a("v_mfma_f32_16x16x32_bf16 %s, %s, %s, %s" % (v(d, 4), v(src + 2, 4), v(S1I + 4, 4), v(d, 4)))
    for e in range(4):
        a("v_lshlrev_b32 %s, 16, %s" % (v(TM + 2 * e), v(26 + e)))
        a("v_and_b32 %s, 0xffff0000, %s" % (v(TM + 2 * e + 1), v(26 + e)))
    for e in range(8):
        a("v_fmac_f32 %s, %s, %s" % (v(TM + e), s(sA), v(DR + e)))
    pack(TM, TM + 4)
    a("s_and_b64 exec, exec, vcc")
    a("buffer_store_dwordx2 %s, %s, %s, %s offen" % (v(OP, 2), v(24), s(SO, 4), s(sROWB)))
    a("buffer_store_dwordx2 %s, %s, %s, %s offen" % (v(OP + 2, 2), v(24), s(SO, 4), s(sB)))
    a("s_mov_b64 exec, -1")
    a("L_fin:")
    a.c("the next launch tags its hand-offs with the complement of this word")
    a("s_lshl_b32 %s, s2, 4" % s(sA))
    a("s_add_u32 %s, %s, %s" % (s(sA), s(sA), s(sW)))
    a("s_cmp_lg_u32 %s, 15" % s(sA))
    a("s_cbranch_scc1 L_noe")
    a("v_mov_b32 %s, 0x%x" % (v(SV), WS_E))
    a("buffer_store_dword %s, %s, %s, 0 offen sc1" % (v(vT), v(SV), s(SWS, 4)))
    a("L_noe:")
    if stamps:
        a("s_waitcnt vmcnt(0)")
        stamp()
        a("s_waitcnt lgkmcnt(0)")
        a("s_lshl_b32 %s, %s, 6" % (s(sA), s(sA)))
        a("s_add_u32 %s, %s, 0x%x" % (s(sA), s(sA), WS_T))
        a("v_mov_b32 %s, 0" % v(SV))
        for k in range(nst[0]):
            a("v_mov_b32 %s, %s" % (v(TM), s(sST + 2 * k)))
            a("buffer_store_dword %s, %s, %s, %s offen offset:%d" % (v(TM), v(SV), s(SWS, 4), s(sA), 4 * k))
        a("v_mov_b32 %s, %s" % (v(TM), s(sSPIN)))
        a("buffer_store_dword %s, %s, %s, %s offen offset:60" % (v(TM), v(SV), s(SWS, 4), s(sA)))
    a("L_end:")
    a("s_endpgm")

    head = open("interleave_layers__spectral_gfnet__spectral_gfnet__prompt.s.ref").read()
    head = "".join(l + "\n" for l in head.split("\n") if l.startswith(";") and "@launch" not in l)
    out = head
    out += "; @launch grid=(256,1,1) block=(1024,1,1) lds=%d\n" % L_END
    out += '.amdgcn_target "amdgcn-amd-amdhsa--gfx950"\n.text\n.globl %s\n.p2align 8\n.type %s,@function\n%s:\n' % (
        NAME, NAME, NAME)
    out += a.text()
    out += ".p2align 8\n.fill 1024, 4, 0xbf810000\n"
    out += """.section .rodata,"a"
.p2align 6
.amdhsa_kernel %s
  .amdhsa_next_free_vgpr %d
  .amdhsa_next_free_sgpr 102
  .amdhsa_accum_offset %d
  .amdhsa_group_segment_fixed_size 0
  .amdhsa_kernarg_size 72
  .amdhsa_user_sgpr_count 2
  .amdhsa_user_sgpr_kernarg_segment_ptr 1
  .amdhsa_system_sgpr_workgroup_id_x 1
.end_amdhsa_kernel
""" % (NAME, NV, NV)
    return out


if __name__ == "__main__":
    dst = sys.argv[1]
    open(dst, "w").write(gen(stamps="stamps" in sys.argv[2:]))
```

```python
import sys
from asmlib import Asm, v, s, fhex, bitop

NAME = "interleave_layers__spectral_gfnet__spectral_gfnet__prompt_kernel"

WS_E = 0
WS_S = 0x10000
WS_P = 0x100000
P_SZ = 655360
WS_X = 0x300000
WS_D = 0x600000
WS_W = 0x900000
WS_T = 0xF00000
WS_SIZE = 0x1000000

L_XI = 0
L_TB = 10240
L_RED = L_TB + 12672
L_S0 = L_RED + 1536
L_WI = L_S0 + 64
L_E2 = L_WI
L_E1 = L_WI + 20992
L_END = L_E1 + 16640

SPIN = 1 << 17

SX, SWS, SO, SWR, SWI = 4, 8, 12, 16, 20
sW, sRHO, sC, sT, sL, sSPIN = 24, 25, 26, 27, 28, 29
sA, sB, sD, sE = 30, 31, 32, 33
sRANK, sROWB = 34, 35
sK = 36
sSOFF, sPOFF, sWOFF, sSIG, sSST, sPG = 54, 55, 56, 57, 58, 59
sM = 60
sST = 64

vTID, vL, vN, vG, vNF, vGF = 0, 1, 2, 3, 4, 5
vT = 6
vM1 = 7
X = 8
XO = 16
WC = 24
WO = 32
TF = 40
TI = 48
FM = 56
MA, MI0, MI1 = 62, 64, 66
DR, DI = 68, 72
TM = 76
OP = 84
SV = 88
aS, aP, aG, aE1W, aE1R, aE2W, aE2R, aRW, aRR, aW = 90, 91, 92, 93, 94, 95, 96, 97, 98, 99
PQ = 100
S1I = 116
mP, mQ, mS = 124, 125, 126
WL = 100
S1B = 8
M0A, M0B, M1 = 16, 20, 24
NV = 128

B_TAG = bitop(lambda d, m, t: (d & ~m) ^ t)
B_ANDX = bitop(lambda d, m, t: (d & m) ^ t)
B_MIS2 = bitop(lambda a, b, t: (a ^ t) | (b ^ t))
B_ORAND = bitop(lambda a, b, m: (a | b) & m)


def gen(stamps=False, opt=None):
    opt = opt or {}
    a = Asm()
    nst = [0]

    def stamp():
        if stamps:
            a("s_memrealtime %s" % s(sST + 2 * nst[0], 2))
            nst[0] += 1

    def srd(d, ptr, nbytes):
        a("s_mov_b32 %s, %s" % (s(d), s(ptr)))
        a("s_mov_b32 %s, %s" % (s(d + 1), s(ptr + 1)))
        a("s_mov_b32 %s, 0x%x" % (s(d + 2), nbytes))
        a("s_mov_b32 %s, 0x00020000" % s(d + 3))

    def ang(dst, f, off, a0):
        if off == 0:
            a("v_mov_b32 %s, %s" % (v(dst), v(a0)))
        elif off == 1:
            a("v_add_f32 %s, %s, %s" % (v(dst), v(f), v(a0)))
        else:
            a("v_fmamk_f32 %s, %s, %s, %s" % (v(dst), v(f), fhex(off), v(a0)))

    def cosrow(dst, f, a0, offs, tmp, amp=None):
        for base in range(0, len(offs), 8):
            o = offs[base:base + 8]
            for e, off in enumerate(o):
                ang(tmp + e, f, off, a0)
            for e in range(len(o)):
                a("v_cos_f32 %s, %s" % (v(tmp + e), v(tmp + e)))
            if amp is not None:
                for e in range(len(o)):
                    a("v_mul_f32 %s, %s, %s" % (v(tmp + e), v(amp), v(tmp + e)))
            for e in range(0, len(o), 2):
                a("v_cvt_pk_bf16_f32 %s, %s, %s" % (v(dst + (base + e) // 2), v(tmp + e), v(tmp + e + 1)))

    def retry(loop):
        a("s_add_u32 %s, %s, 1" % (s(sSPIN), s(sSPIN)))
        a("s_cmp_lt_u32 %s, 0x%x" % (s(sSPIN), SPIN))
        a("s_cbranch_scc1 %s" % loop)

    def check4(r, mask_v, done):
        a("v_bitop3_b32 %s, %s, %s, %s %s" % (v(TM), v(r), v(r + 1), v(vT), B_MIS2))
        a("v_bitop3_b32 %s, %s, %s, %s %s" % (v(TM + 1), v(r + 2), v(r + 3), v(vT), B_MIS2))
        a("v_bitop3_b32 %s, %s, %s, %s %s" % (v(TM), v(TM), v(TM + 1), mask_v, B_ORAND))
        a("v_cmp_ne_u32 vcc, 0, %s" % v(TM))
        a("s_cbranch_vccz %s" % done)

    def unpack(src, lo, hi):
        a("v_lshl_or_b32 %s, %s, 16, %s" % (v(lo), v(src), v(TM + 6)))
        a("v_and_or_b32 %s, %s, %s, %s" % (v(hi), v(src), s(sA), v(TM + 6)))
        a("v_and_b32 %s, %s, %s" % (v(lo), s(sB), v(lo)))

    def cmul(c, sn, sign):
        for i in range(4):
            a("v_mul_f32 %s, %s, %s" % (v(TM + i), v(c + i), v(DRc[0] + i)))
        for i in range(4):
            if sign > 0:
                a("v_mul_f32 %s, %s, %s" % (v(TM + 4 + i), v(sn + i), v(DRc[0] + i)))
            else:
                a("v_mul_f32 %s, -%s, %s" % (v(TM + 4 + i), v(sn + i), v(DRc[0] + i)))
        for i in range(4):
            if sign > 0:
                a("v_fma_f32 %s, -%s, %s, %s" % (v(TM + i), v(sn + i), v(DRc[1] + i), v(TM + i)))
            else:
                a("v_fmac_f32 %s, %s, %s" % (v(TM + i), v(sn + i), v(DRc[1] + i)))
        for i in range(4):
            a("v_fmac_f32 %s, %s, %s" % (v(TM + 4 + i), v(c + i), v(DRc[1] + i)))

    DRc = (DR, DI)

    def pack(first, second):
        a("v_cvt_pk_bf16_f32 %s, %s, %s" % (v(OP), v(first), v(first + 1)))
        a("v_cvt_pk_bf16_f32 %s, %s, %s" % (v(OP + 1), v(first + 2), v(first + 3)))
        a("v_cvt_pk_bf16_f32 %s, %s, %s" % (v(OP + 2), v(second), v(second + 1)))
        a("v_cvt_pk_bf16_f32 %s, %s, %s" % (v(OP + 3), v(second + 2), v(second + 3)))

    FRE, FIM = v(FM + 2, 4), v(FM, 4)

    def radix16(data_is_a, inverse):
        m_re, m_im = (FIM, FRE) if inverse else (FRE, FIM)
        for d, m in ((DR, m_re), (DI, m_im)):
            ab = (v(OP, 4), m) if data_is_a else (m, v(OP, 4))
            a("v_mfma_f32_16x16x32_bf16 %s, %s, %s, 0" % (v(d, 4), ab[0], ab[1]))

    def barrier():
        a("s_waitcnt lgkmcnt(0)")
        a("s_barrier")

    a("s_cmp_ge_u32 s2, 256")
    a("s_cbranch_scc1 L_end")
    a("s_load_dwordx16 %s, s[0:1], 0" % s(sK, 16))
    a("s_load_dwordx2 %s, s[0:1], 64" % s(sK + 16, 2))
    stamp()
    a("v_lshrrev_b32 %s, 6, v0" % v(TM))
    a("v_and_b32 %s, 63, v0" % v(vL))
    a("v_readfirstlane_b32 %s, %s" % (s(sW), v(TM)))
    a.c("pull the kernel's code into L2")
    a("s_getpc_b64 %s" % s(sA, 2))
    a("s_and_b32 %s, %s, 0xffffff00" % (s(sA), s(sA)))
    a("v_lshlrev_b32 %s, 7, %s" % (v(TM), v(vL)))
    a("v_mov_b32 %s, 0" % v(TM + 1))
    a("v_lshl_add_u64 %s, %s, 0, %s" % (v(TM, 2), v(TM, 2), s(sA, 2)))
    a("s_cmp_lg_u32 %s, 15" % s(sW))
    a("s_cbranch_scc1 L_nopf")
    a("global_load_dword %s, %s, off" % (v(NV - 1), v(TM, 2)))
    a("L_nopf:")
    a("s_and_b32 %s, s2, 7" % s(sA))
    a("s_lshr_b32 %s, s2, 3" % s(sRANK))
    a("s_lshl_b32 %s, %s, 5" % (s(sRHO), s(sA)))
    a("s_add_u32 %s, %s, %s" % (s(sRHO), s(sRHO), s(sRANK)))
    a("s_mul_i32 %s, %s, 20" % (s(sC), s(sA)))
    a("s_add_u32 %s, %s, %s" % (s(sC), s(sC), s(sRANK)))
    a("s_lshl_b32 %s, %s, 13" % (s(sSOFF), s(sA)))
    a("s_add_u32 %s, %s, 0x%x" % (s(sSOFF), s(sSOFF), WS_S))
    a.c("W task: sigma = (rank < 16 ? 128 : 0) + (rank & 15) * 8 + (b & 7) = b ^ 128")
    a("s_xor_b32 %s, s2, 128" % s(sSIG))
    a.c("first row = 512*g + 16*n1 + 4*a with rho = (n1*4+g)*4+a")
    a("s_bfe_u32 %s, %s, 0x20002" % (s(sA), s(sRHO)))
    a("s_lshl_b32 %s, %s, 9" % (s(sA), s(sA)))
    a("s_and_b32 %s, %s, 0xf0" % (s(sB), s(sRHO)))
    a("s_add_u32 %s, %s, %s" % (s(sA), s(sA), s(sB)))
    a("s_and_b32 %s, %s, 3" % (s(sB), s(sRHO)))
    a("s_lshl_b32 %s, %s, 2" % (s(sB), s(sB)))
    a("s_add_u32 %s, %s, %s" % (s(sA), s(sA), s(sB)))
    a("s_mul_i32 %s, %s, 1280" % (s(sROWB), s(sA)))
    a("s_lshl_b32 %s, %s, 10" % (s(sA), s(sW)))
    a("s_mov_b32 m0, %s" % s(sA))
    a("s_cmp_ge_u32 %s, 5" % s(sW))
    a("s_cselect_b32 %s, %d, 0" % (s(sB), 256 * 1280 - 5120))
    a("s_add_u32 %s, %s, %s" % (s(sA), s(sA), s(sB)))
    a("s_add_u32 %s, %s, %s" % (s(sA), s(sA), s(sROWB)))
    a("v_lshlrev_b32 %s, 4, %s" % (v(TM + 2), v(vL)))
    a("s_mov_b32 %s, 0" % s(sSPIN))
    a("s_waitcnt lgkmcnt(0)")
    srd(SX, sK, 2621440)
    a("s_cmp_ge_u32 %s, 10" % s(sW))
    a("s_cbranch_scc1 L_nox")
    a("buffer_load_dwordx4 %s, %s, %s offen lds" % (v(TM + 2), s(SX, 4), s(sA)))
    a("L_nox:")
    a("s_load_dword %s, %s, 0x%x" % (s(sT), s(sK + 16, 2), WS_E))
    srd(SWS, sK + 16, WS_SIZE)
    srd(SO, sK + 12, 2621440)
    a("s_cmp_ge_u32 %s, 128" % s(sSIG))
    a("s_cselect_b64 %s, %s, %s" % (s(SWR, 2), s(sK + 8, 2), s(sK + 2, 2)))
    a("s_cselect_b64 %s, %s, %s" % (s(SWI, 2), s(sK + 10, 2), s(sK + 4, 2)))
    for d in (SWR, SWI):
        a("s_mov_b32 %s, %d" % (s(d + 2), 2048 * 642))
        a("s_mov_b32 %s, 0x00020000" % s(d + 3))
    a.c("W row p = q + 8*(4*kq+kk) + 128*(4*g+i); sigma = (q,g,kq), wave = (i,kk)")
    a("s_bfe_u32 %s, %s, 0x30004" % (s(sA), s(sSIG)))
    a("s_and_b32 %s, %s, 3" % (s(sB), s(sSIG)))
    a("s_lshl_b32 %s, %s, 5" % (s(sB), s(sB)))
    a("s_add_u32 %s, %s, %s" % (s(sA), s(sA), s(sB)))
    a("s_bfe_u32 %s, %s, 0x20002" % (s(sB), s(sSIG)))
    a("s_lshl_b32 %s, %s, 9" % (s(sB), s(sB)))
    a("s_add_u32 %s, %s, %s" % (s(sA), s(sA), s(sB)))
    a("s_and_b32 %s, %s, 3" % (s(sB), s(sW)))
    a("s_lshl_b32 %s, %s, 3" % (s(sB), s(sB)))
    a("s_add_u32 %s, %s, %s" % (s(sA), s(sA), s(sB)))
    a("s_lshr_b32 %s, %s, 2" % (s(sB), s(sW)))
    a("s_lshl_b32 %s, %s, 7" % (s(sB), s(sB)))
    a("s_add_u32 %s, %s, %s" % (s(sA), s(sA), s(sB)))
    a("s_mul_i32 %s, %s, 642" % (s(sA), s(sA)))
    a("s_and_b32 %s, %s, 0xfffffff0" % (s(sA), s(sA)))
    a("s_mul_i32 %s, %s, 656" % (s(sB), s(sW)))
    a("s_add_u32 m0, %s, %d" % (s(sB), L_WI))
    a("s_bfm_b64 exec, 41, 0")
    a("buffer_load_dwordx4 %s, %s, %s offen lds" % (v(TM + 2), s(SWR, 4), s(sA)))
    a("s_add_u32 m0, %s, %d" % (s(sB), L_WI + 16 * 656))
    a("buffer_load_dwordx4 %s, %s, %s offen lds" % (v(TM + 2), s(SWI, 4), s(sA)))
    a("s_mov_b64 exec, -1")

    a("v_and_b32 %s, 15, %s" % (v(vN), v(vL)))
    a("v_lshrrev_b32 %s, 4, %s" % (v(vG), v(vL)))
    a("v_cvt_f32_u32 %s, %s" % (v(vNF), v(vN)))
    a("v_cvt_f32_u32 %s, %s" % (v(vGF), v(vG)))
    a("v_mov_b32 %s, 0x00010001" % v(vM1))
    a.c("s[60:61] = lanes with g >= 2; s[62:63] = odd lanes")
    a("s_mov_b32 %s, 0" % s(sM))
    a("s_mov_b32 %s, -1" % s(sM + 1))
    a("s_mov_b32 %s, 0xaaaaaaaa" % s(sM + 2))
    a("s_mov_b32 %s, 0xaaaaaaaa" % s(sM + 3))
    a.c("sign mask: odd lanes with g >= 2")
    a("s_and_b64 vcc, %s, %s" % (s(sM, 2), s(sM + 2, 2)))
    a("v_mov_b32 %s, 0x80008000" % v(TM))
    a("v_cndmask_b32 %s, 0, %s, vcc" % (v(mS), v(TM)))

    F, A0, AMP, T8 = DR, DR + 1, DR + 2, TM
    a.c("stage-1 matrix: lane = output index, K = d1")
    a("s_lshr_b32 %s, %s, 2" % (s(sA), s(sW)))
    a("s_lshl_b32 %s, %s, 4" % (s(sA), s(sA)))
    a("v_add_u32 %s, %s, %s" % (v(DI), s(sA), v(vN)))
    a("v_lshrrev_b32 %s, 1, %s" % (v(F), v(DI)))
    a("v_cmp_eq_u32 vcc, 1, %s" % v(DI))
    a("v_mov_b32 %s, 0x3e800000" % v(DI + 1))
    a("v_cndmask_b32 %s, 0, %s, %s" % (v(A0), v(DI + 1), s(sM + 2, 2)))
    a("v_cndmask_b32 %s, %s, 20, vcc" % (v(F), v(F)))
    a("v_cndmask_b32 %s, %s, 0, vcc" % (v(A0), v(A0)))
    a("v_cvt_f32_u32 %s, %s" % (v(F), v(F)))
    a("v_mul_f32 %s, %s, %s" % (v(F), fhex(1 / 40), v(F)))
    a("v_mul_f32 %s, 4.0, %s" % (v(DI + 2), v(vGF)))
    a("v_fmac_f32 %s, %s, %s" % (v(A0), v(F), v(DI + 2)))
    cosrow(S1B, F, A0, [0, 1, 2, 3, 16, 17, 18, 19, 32, 33, 34, 35], T8)
    a("v_cndmask_b32 %s, %s, 0, %s" % (v(S1B + 6), v(S1B + 4), s(sM, 2)))
    a("v_cndmask_b32 %s, %s, 0, %s" % (v(S1B + 7), v(S1B + 5), s(sM, 2)))
    a("v_mov_b32 %s, 0" % v(S1B + 4))
    a("v_mov_b32 %s, 0" % v(S1B + 5))

    a.c("stage-2 matrices: lane = k2, K = (half, d2)")
    a("s_cmp_ge_u32 %s, 10" % s(sW))
    a("s_cbranch_scc1 L_c2done")
    D8 = DI + 2
    PH = DI + 3
    a("v_and_b32 %s, 1, %s" % (v(D8), v(vG)))
    a("v_lshlrev_b32 %s, 3, %s" % (v(D8), v(D8)))
    a("v_cvt_f32_u32 %s, %s" % (v(D8), v(D8)))
    a("v_cndmask_b32 %s, 0, -%s, %s" % (v(PH), v(DI + 1), s(sM, 2)))
    a("s_lshl_b32 %s, %s, 1" % (s(sA), s(sW)))
    a("v_mul_u32_u24 %s, 40, %s" % (v(DI), v(vN)))
    a("v_add_u32 %s, %s, %s" % (v(DI), s(sA), v(DI)))
    a("v_add_u32 %s, 1, %s" % (v(F), v(DI)))
    a("v_cvt_f32_u32 %s, %s" % (v(F), v(F)))
    a("v_mul_f32 %s, %s, %s" % (v(F), fhex(1 / 640), v(F)))
    a("v_fma_f32 %s, %s, %s, %s" % (v(A0), v(F), v(D8), v(PH)))
    cosrow(M1, F, A0, list(range(8)), T8)
    a("s_cmp_eq_u32 %s, 0" % s(sW))
    a("s_cbranch_scc1 L_c2sp")
    a("v_cvt_f32_u32 %s, %s" % (v(F), v(DI)))
    a("v_mul_f32 %s, %s, %s" % (v(F), fhex(1 / 640), v(F)))
    a("v_fma_f32 %s, %s, %s, %s" % (v(A0), v(F), v(D8), v(PH)))
    cosrow(M0A, F, A0, list(range(8)), T8)
    a("s_branch L_c2done")
    a("L_c2sp:")
    a.c("tile 0: slots 0..7 come from class 0 (slot 0 = Nyquist / sqrt 2), slots 8..15 from class 20")
    a("v_cmp_le_u32 vcc, 8, %s" % v(vN))
    a("v_add_u32 %s, 20, %s" % (v(F), v(DI)))
    a("v_cndmask_b32 %s, %s, %s, vcc" % (v(DI), v(DI), v(F)))
    a("s_xor_b64 %s, vcc, %s" % (s(sA, 2), s(sM, 2)))
    a("v_cmp_eq_u32 vcc, 0, %s" % v(vN))
    a("v_mov_b32 %s, 320" % v(F))
    a("v_cndmask_b32 %s, %s, %s, vcc" % (v(F), v(DI), v(F)))
    a("v_cvt_f32_u32 %s, %s" % (v(F), v(F)))
    a("v_mul_f32 %s, %s, %s" % (v(F), fhex(1 / 640), v(F)))
    a("v_mov_b32 %s, %s" % (v(AMP), fhex(0.5 ** 0.5)))
    a("v_cndmask_b32 %s, 1.0, %s, vcc" % (v(AMP), v(AMP)))
    a("v_cndmask_b32 %s, %s, 0, %s" % (v(AMP), v(AMP), s(sA, 2)))
    a("v_mul_f32 %s, %s, %s" % (v(A0), v(F), v(D8)))
    cosrow(M0A, F, A0, list(range(8)), T8, AMP)
    a("s_andn2_b64 %s, %s, vcc" % (s(sA, 2), s(sA, 2)))
    a("v_cndmask_b32 %s, %s, -%s, %s" % (v(PH), v(DI + 1), v(DI + 1), s(sM, 2)))
    a("v_cndmask_b32 %s, 0, 1.0, %s" % (v(AMP), s(sA, 2)))
    a("v_add_f32 %s, %s, %s" % (v(A0), v(A0), v(PH)))
    cosrow(M0B, F, A0, list(range(8)), T8, AMP)
    a("L_c2done:")

    G4 = DI
    a("v_mul_f32 %s, 4.0, %s" % (v(G4), v(vGF)))
    a.c("16-point DFT matrix")
    a("v_mul_f32 %s, %s, %s" % (v(F), fhex(1 / 16), v(vNF)))
    a("v_mul_f32 %s, %s, %s" % (v(A0), v(F), v(G4)))
    for e in range(4):
        ang(T8 + e, F, e, A0)
    for e in range(4):
        a("v_sin_f32 %s, %s" % (v(T8 + 4 + e), v(T8 + e)))
    for e in range(4):
        a("v_cos_f32 %s, %s" % (v(T8 + e), v(T8 + e)))
    for e in range(2):
        a("v_cvt_pk_bf16_f32 %s, -%s, -%s" % (v(FM + e), v(T8 + 4 + 2 * e), v(T8 + 5 + 2 * e)))
        a("v_cvt_pk_bf16_f32 %s, %s, %s" % (v(FM + 4 + e), v(T8 + 4 + 2 * e), v(T8 + 5 + 2 * e)))
        a("v_cvt_pk_bf16_f32 %s, %s, %s" % (v(FM + 2 + e), v(T8 + 2 * e), v(T8 + 1 + 2 * e)))
    a.c("twiddles n2*(q+8*k1)/2048 in both layouts")
    a("s_and_b32 %s, %s, 7" % (s(sA), s(sW)))
    a("v_cvt_f32_u32 %s, %s" % (v(AMP), s(sA)))
    a("v_fmamk_f32 %s, %s, %s, %s" % (v(F), v(vNF), fhex(8), v(AMP)))
    a("v_mul_f32 %s, %s, %s" % (v(F), fhex(1 / 2048), v(F)))
    a("v_mul_f32 %s, %s, %s" % (v(A0), v(F), v(G4)))
    for e in range(4):
        ang(TF + e, F, e, A0)
    a("v_fmamk_f32 %s, %s, %s, %s" % (v(A0), v(G4), fhex(8), v(AMP)))
    a("v_mul_f32 %s, %s, %s" % (v(F), fhex(1 / 2048), v(vNF)))
    a("v_mul_f32 %s, %s, %s" % (v(A0), v(F), v(A0)))
    for e in range(4):
        ang(TI + e, F, 8 * e, A0)
    for t in (TF, TI):
        for e in range(4):
            a("v_sin_f32 %s, %s" % (v(t + 4 + e), v(t + e)))
        for e in range(4):
            a("v_cos_f32 %s, %s" % (v(t + e), v(t + e)))
    a.c("radix-8 matrices, angle q*(16*j+n1)/128")
    H, Q4, W1 = DI + 1, DI + 2, DI + 3
    a("v_lshrrev_b32 %s, 1, %s" % (v(H), v(vN)))
    a("v_cvt_f32_u32 %s, %s" % (v(H), v(H)))
    a("v_mov_b32 %s, 0x3e800000" % v(Q4))
    a("v_cndmask_b32 %s, 0, %s, %s" % (v(Q4), v(Q4), s(sM + 2, 2)))
    a("v_cvt_f32_u32 %s, %s" % (v(W1), s(sW)))
    a("v_mul_f32 %s, %s, %s" % (v(F), fhex(1 / 128), v(H)))
    a("v_fmamk_f32 %s, %s, %s, %s" % (v(A0), v(vGF), fhex(32), v(W1)))
    a("v_fma_f32 %s, %s, %s, %s" % (v(T8), v(F), v(A0), v(Q4)))
    ang(T8 + 1, F, 16, T8)
    a("v_fmamk_f32 %s, %s, %s, %s" % (v(F), v(H), fhex(16), v(W1)))
    a("v_mul_f32 %s, %s, %s" % (v(F), fhex(1 / 128), v(F)))
    a("v_add_f32 %s, %s, %s" % (v(A0), v(vGF), v(vGF)))
    a("v_fma_f32 %s, %s, %s, -%s" % (v(T8 + 2), v(F), v(A0), v(Q4)))
    ang(T8 + 3, F, 1, T8 + 2)
    for e in range(4):
        a("v_sin_f32 %s, %s" % (v(T8 + 4 + e), v(T8 + e)))
    for e in range(4):
        a("v_cos_f32 %s, %s" % (v(T8 + e), v(T8 + e)))
    for e in range(2):
        a("v_cvt_pk_bf16_f32 %s, %s, %s" % (v(MA + e), v(T8 + e), v(T8 + 4 + e)))
        a("v_cvt_pk_bf16_f32 %s, %s, -%s" % (v(MI1 + e), v(T8 + 2 + e), v(T8 + 6 + e)))
    a.c("the Nyquist column (c = 0, tile 0) keeps only the real part")
    a("s_cmp_eq_u32 %s, 0" % s(sC))
    a("s_cselect_b64 vcc, %s, 0" % s(sM + 2, 2))
    for e in range(2):
        a("v_cndmask_b32 %s, %s, 0, vcc" % (v(MI0 + e), v(MI1 + e)))
    a.c("addresses")
    a("v_lshlrev_b32 %s, 3, v0" % v(aS))
    a("s_lshl_b32 %s, %s, 2" % (s(sA), s(sW)))
    a("v_add_u32 %s, %s, %s" % (v(T8), s(sA), v(vG)))
    a("v_mul_u32_u24 %s, 10240, %s" % (v(aP), v(T8)))
    a("v_lshl_add_u32 %s, %s, 2, %s" % (v(aP), v(vN), v(aP)))
    a("s_lshl_b32 %s, %s, 6" % (s(sPOFF), s(sC)))
    a("s_add_u32 %s, %s, 0x%x" % (s(sPOFF), s(sPOFF), WS_P))
    a("s_and_b32 %s, %s, 63" % (s(sB), s(sC)))
    a("s_mul_i32 %s, %s, 10240" % (s(sPG), s(sB)))
    a("s_add_u32 %s, %s, 0x%x" % (s(sPG), s(sPG), WS_P))
    a("s_lshl_b32 %s, %s, 10" % (s(sA), s(sW)))
    a("v_lshl_add_u32 %s, %s, 2, %s" % (v(aG), v(vL), s(sA)))
    a("s_lshl_b32 %s, %s, 7" % (s(sSST), s(sB)))
    a("s_cmp_ge_u32 %s, 64" % s(sC))
    a("s_cselect_b32 %s, 0x10000, 0" % s(sA))
    a("s_add_u32 %s, %s, %s" % (s(sSST), s(sSST), s(sA)))
    a("s_lshl_b32 %s, %s, 14" % (s(sA), s(sW)))
    a("s_add_u32 %s, %s, %s" % (s(sSST), s(sSST), s(sA)))
    a("s_add_u32 %s, %s, 0x%x" % (s(sSST), s(sSST), WS_S + 0x20000))
    a("s_lshl_b32 %s, %s, 5" % (s(sA), s(sW)))
    a("s_add_u32 %s, %s, %d" % (s(sA), s(sA), L_E1))
    a("v_mul_u32_u24 %s, 520, %s" % (v(aE1W), v(vN)))
    a("v_lshl_add_u32 %s, %s, 3, %s" % (v(aE1W), v(vG), v(aE1W)))
    a("v_add_u32 %s, %s, %s" % (v(aE1W), s(sA), v(aE1W)))
    a("s_mul_i32 %s, %s, 1040" % (s(sA), s(sW)))
    a("s_add_u32 %s, %s, %d" % (s(sA), s(sA), L_E1))
    a("v_lshl_add_u32 %s, %s, 3, %s" % (v(aE1R), v(vL), s(sA)))
    a("s_lshl_b32 %s, %s, 6" % (s(sA), s(sW)))
    a("s_add_u32 %s, %s, %d" % (s(sA), s(sA), L_E2))
    a("v_mul_u32_u24 %s, 1032, %s" % (v(aE2W), v(vN)))
    a("v_lshl_add_u32 %s, %s, 3, %s" % (v(aE2W), v(vG), v(aE2W)))
    a("v_add_u32 %s, %s, %s" % (v(aE2W), s(sA), v(aE2W)))
    a("s_mul_i32 %s, %s, 1032" % (s(sA), s(sW)))
    a("s_add_u32 %s, %s, %d" % (s(sA), s(sA), L_E2))
    a("v_lshl_add_u32 %s, %s, 3, %s" % (v(aE2R), v(vL), s(sA)))
    a("s_lshl_b32 %s, %s, 2" % (s(sA), s(sW)))
    a("s_add_u32 %s, %s, %d" % (s(sA), s(sA), L_RED))
    a("v_mul_u32_u24 %s, 96, %s" % (v(aRW), v(vN)))
    a("v_add_u32 %s, %s, %s" % (v(aRW), s(sA), v(aRW)))
    a("v_and_b32 %s, 31, %s" % (v(T8), v(vL)))
    a("v_mul_u32_u24 %s, 48, %s" % (v(aRR), v(T8)))
    a("v_add_u32 %s, %d, %s" % (v(aRR), L_RED, v(aRR)))
    a.c("W piece: task (q, g, n>>2), column c*2+cc, kk = n&3")
    a("v_lshrrev_b32 %s, 2, %s" % (v(T8), v(vL)))
    a("v_mul_u32_u24 %s, 20480, %s" % (v(aW), v(T8)))
    a("v_and_b32 %s, 3, %s" % (v(T8), v(vL)))
    a("v_lshl_add_u32 %s, %s, 4, %s" % (v(aW), v(T8), v(aW)))
    a("s_and_b32 %s, %s, 7" % (s(sA), s(sW)))
    a("s_mul_i32 %s, %s, %d" % (s(sWOFF), s(sA), 16 * 20480))
    a("s_lshr_b32 %s, %s, 3" % (s(sA), s(sW)))
    a("s_lshl_b32 %s, %s, 1" % (s(sB), s(sC)))
    a("s_add_u32 %s, %s, %s" % (s(sA), s(sA), s(sB)))
    a("s_lshl_b32 %s, %s, 6" % (s(sA), s(sA)))
    a("s_add_u32 %s, %s, %s" % (s(sWOFF), s(sWOFF), s(sA)))
    a("s_add_u32 %s, %s, 0x%x" % (s(sWOFF), s(sWOFF), WS_W))

    a("s_and_b32 %s, %s, 3" % (s(sD), s(sW)))
    a("s_mul_i32 %s, %s, 1280" % (s(sA), s(sD)))
    a("v_lshl_add_u32 %s, %s, 3, %s" % (v(DR), v(vL), s(sA)))
    a("v_and_b32 %s, 31, %s" % (v(DR + 1), v(vL)))
    a("v_lshl_add_u32 %s, %s, 3, %s" % (v(DR + 1), v(DR + 1), s(sA)))
    a("s_waitcnt lgkmcnt(0)")
    a("s_not_b32 %s, %s" % (s(sT), s(sT)))
    a("v_mov_b32 %s, %s" % (v(vT), s(sT)))
    a("s_waitcnt vmcnt(2)")
    a("s_barrier")
    stamp()
    a("s_cmp_ge_u32 %s, 12" % s(sW))
    a("s_cbranch_scc1 L_var")
    A1, A2 = 28, 34
    for r, dst in ((0, A1), (5120, A2)):
        a("ds_read_b64_tr_b16 %s, %s offset:%d" % (v(dst, 2), v(DR), r))
        a("ds_read_b64_tr_b16 %s, %s offset:%d" % (v(dst + 2, 2), v(DR), r + 512))
        a("ds_read_b64_tr_b16 %s, %s offset:%d" % (v(dst + 4, 2), v(DR + 1), r + 1024))
    a.c("T address: t*528 + row*64 + part*32 + g*8")
    a("s_lshr_b32 %s, %s, 2" % (s(sA), s(sW)))
    a("s_mul_i32 %s, %s, %d" % (s(sA), s(sA), 8 * 528))
    a("s_lshl_b32 %s, %s, 7" % (s(sB), s(sD)))
    a("s_add_u32 %s, %s, %s" % (s(sA), s(sA), s(sB)))
    a("s_add_u32 %s, %s, %d" % (s(sA), s(sA), L_TB))
    a("v_lshrrev_b32 %s, 1, %s" % (v(SV), v(vN)))
    a("v_mul_u32_u24 %s, 528, %s" % (v(SV), v(SV)))
    a("v_and_b32 %s, 1, %s" % (v(SV + 1), v(vN)))
    a("v_lshl_add_u32 %s, %s, 5, %s" % (v(SV), v(SV + 1), v(SV)))
    a("v_lshl_add_u32 %s, %s, 3, %s" % (v(SV), v(vG), v(SV)))
    a("v_add_u32 %s, %s, %s" % (v(SV), s(sA), v(SV)))
    a("s_waitcnt lgkmcnt(0)")
    for src, d in ((A1, DR), (A2, DI)):
        a("v_mfma_f32_16x16x32_bf16 %s, %s, %s, 0" % (v(d, 4), v(src, 4), v(S1B, 4)))
        a("v_mfma_f32_16x16x32_bf16 %s, %s, %s, %s" % (v(d, 4), v(src + 2, 4), v(S1B + 4, 4), v(d, 4)))
    pack(DR, DI)
    a("ds_write_b64 %s, %s" % (v(SV), v(OP, 2)))
    a("ds_write_b64 %s, %s offset:64" % (v(SV), v(OP + 2, 2)))
    a("s_branch L_s1done")
    a("L_var:")
    a.c("row statistics: one row per half wave")
    a("v_lshrrev_b32 %s, 5, %s" % (v(DR + 2), v(vL)))
    a("v_mul_u32_u24 %s, 5120, %s" % (v(DR + 3), v(DR + 2)))
    a("v_add_u32 %s, %s, %s" % (v(DR + 1), v(DR + 1), v(DR + 3)))
    for e in range(5):
        a("ds_read_b64 %s, %s offset:%d" % (v(28 + 2 * e, 2), v(DR + 1), 256 * e))
    a("v_mov_b32 %s, 0" % v(TM))
    a("v_mov_b32 %s, 0" % v(TM + 1))
    a("v_mov_b32 %s, 0x3f803f80" % v(TM + 2))
    a("s_lshl_b32 %s, %s, 3" % (s(sA), s(sD)))
    a("s_add_u32 %s, %s, %d" % (s(sA), s(sA), L_S0))
    a("v_lshl_add_u32 %s, %s, 2, %s" % (v(DR + 2), v(DR + 2), s(sA)))
    a("s_waitcnt lgkmcnt(0)")
    for e in range(10):
        a("v_dot2c_f32_bf16 %s, %s, %s" % (v(TM), v(28 + e), v(28 + e)))
        a("v_dot2c_f32_bf16 %s, %s, %s" % (v(TM + 1), v(28 + e), v(TM + 2)))
    for sh in (1, 2, 4, 8):
        for r in (TM, TM + 1):
            a("v_add_f32_dpp %s, %s, %s row_ror:%d row_mask:0xf bank_mask:0xf" % (v(r), v(r), v(r), sh))
    a("v_mov_b32 %s, %s" % (v(TM + 2), v(TM)))
    a("v_mov_b32 %s, %s" % (v(TM + 3), v(TM + 1)))
    a("v_permlane16_swap_b32 %s, %s" % (v(TM), v(TM + 2)))
    a("v_permlane16_swap_b32 %s, %s" % (v(TM + 1), v(TM + 3)))
    a("v_add_f32 %s, %s, %s" % (v(TM), v(TM), v(TM + 2)))
    a("v_add_f32 %s, %s, %s" % (v(TM + 1), v(TM + 1), v(TM + 3)))
    a("v_mul_f32 %s, %s, %s" % (v(TM), fhex(2048.0 ** 2 / 640), v(TM)))
    a("v_mul_f32 %s, %s, %s" % (v(TM + 1), fhex(2048.0 / 640), v(TM + 1)))
    a("v_fma_f32 %s, -%s, %s, %s" % (v(TM), v(TM + 1), v(TM + 1), v(TM)))
    a("v_max_f32 %s, 0, %s" % (v(TM), v(TM)))
    a("v_add_f32 %s, %s, %s" % (v(TM), fhex(1e-5 * 2048.0 ** 2), v(TM)))
    a("v_rsq_f32 %s, %s" % (v(TM), v(TM)))
    a("s_movk_i32 %s, 0xff" % s(sA))
    a("v_bfi_b32 %s, %s, %s, %s" % (v(TM), s(sA), v(vT), v(TM)))
    a("ds_write_b32 %s, %s" % (v(DR + 2), v(TM)))
    a("L_s1done:")
    barrier()
    a("s_cmp_ge_u32 %s, 10" % s(sW))
    a("s_cbranch_scc1 L_s2other")
    a.c("stage 2: two tiles per wave")
    a("v_lshrrev_b32 %s, 1, %s" % (v(SV), v(vG)))
    a("v_xor_b32 %s, %s, %s" % (v(SV), v(SV), v(vN)))
    a("v_lshlrev_b32 %s, 5, %s" % (v(SV), v(SV)))
    a("v_and_b32 %s, 16, %s" % (v(SV + 1), v(vL)))
    a("s_mul_i32 %s, %s, 1056" % (s(sA), s(sW)))
    a("s_add_u32 %s, %s, %d" % (s(sA), s(sA), L_TB))
    a("v_add3_u32 %s, %s, %s, %s" % (v(SV), v(SV), v(SV + 1), s(sA)))
    a("ds_read_b128 %s, %s" % (v(28, 4), v(SV)))
    a("ds_read_b128 %s, %s offset:528" % (v(32, 4), v(SV)))
    a("v_bitop3_b32 %s, %s, %s, %s %s" % (v(SV + 1), v(vT), v(vM1), v(mS), B_ANDX))
    a("s_mul_i32 %s, %s, 10240" % (s(sA), s(sRHO)))
    a("s_lshl_b32 %s, %s, 10" % (s(sB), s(sW)))
    a("s_add_u32 %s, %s, %s" % (s(sA), s(sA), s(sB)))
    a("s_add_u32 %s, %s, 0x%x" % (s(sA), s(sA), WS_X))
    a("v_lshlrev_b32 %s, 2, %s" % (v(SV), v(vL)))
    a("s_waitcnt lgkmcnt(0)")
    for e in range(8):
        a("v_xor_b32 %s, %s, %s" % (v(28 + e), v(mS), v(28 + e)))
    a("v_mfma_f32_16x16x32_bf16 %s, %s, %s, 0" % (v(DR, 4), v(M0A, 4), v(28, 4)))
    a("v_mfma_f32_16x16x32_bf16 %s, %s, %s, 0" % (v(DI, 4), v(M1, 4), v(32, 4)))
    a("s_cmp_lg_u32 %s, 0" % s(sW))
    a("s_cbranch_scc1 L_s2n")
    a("v_mfma_f32_16x16x32_bf16 %s, %s, %s, 0" % (v(TM, 4), v(M0B, 4), v(28, 4)))
    for e in range(4):
        a("v_cndmask_b32 %s, %s, %s, %s" % (v(DR + e), v(DR + e), v(TM + e), s(sM + 2, 2)))
    a("L_s2n:")
    for e in range(4):
        a("v_cvt_pk_bf16_f32 %s, %s, %s" % (v(OP + e), v(DR + e), v(DI + e)))
    for e in range(4):
        a("v_bitop3_b32 %s, %s, %s, %s %s" % (v(OP + e), v(OP + e), v(vM1), v(SV + 1), B_TAG))
        a("buffer_store_dword %s, %s, %s, %s offen offset:%d sc1" % (v(OP + e), v(SV), s(SWS, 4), s(sA), 256 * e))
    a("s_waitcnt vmcnt(4)")
    a("s_branch L_s2done")
    a("L_s2other:")
    a("s_waitcnt vmcnt(0)")
    a("s_cmp_lg_u32 %s, 10" % s(sW))
    a("s_cbranch_scc1 L_s2done")
    a.c("publish the eight layer-0 scales, one copy per replica")
    a("v_and_b32 %s, 7, %s" % (v(SV), v(vL)))
    a("v_lshlrev_b32 %s, 2, %s" % (v(SV), v(SV)))
    a("ds_read_b32 %s, %s offset:%d" % (v(TM), v(SV), L_S0))
    a("v_lshrrev_b32 %s, 3, %s" % (v(SV + 1), v(vL)))
    a("v_lshl_add_u32 %s, %s, 13, %s" % (v(SV), v(SV + 1), v(SV)))
    a("s_lshl_b32 %s, %s, 5" % (s(sA), s(sRHO)))
    a("s_add_u32 %s, %s, 0x%x" % (s(sA), s(sA), WS_S))
    a("s_waitcnt lgkmcnt(0)")
    a("buffer_store_dword %s, %s, %s, %s offen sc1" % (v(TM), v(SV), s(SWS, 4), s(sA)))
    a("L_s2done:")
    stamp()
    a("s_barrier")

    a.c("round R: tp = R>>1, k2 = 4*((l>>3)&3) + 2*(R&1) + (l>>5), cc = (l>>2)&1, kk = l&3")
    a("s_mov_b32 %s, %s" % (s(sD), s(sW)))
    a("v_and_b32 %s, %s, %s" % (v(SV + 1), v(vT), v(vM1)))
    a("L_wt:")
    K2, TT, KK = DR, DR + 1, DR + 2
    a("v_bfe_u32 %s, %s, 3, 2" % (v(K2), v(vL)))
    a("v_lshrrev_b32 %s, 5, %s" % (v(TT), v(vL)))
    a("v_lshl_add_u32 %s, %s, 2, %s" % (v(K2), v(K2), v(TT)))
    a("s_and_b32 %s, %s, 1" % (s(sA), s(sD)))
    a("s_lshl_b32 %s, %s, 1" % (s(sA), s(sA)))
    a("v_add_u32 %s, %s, %s" % (v(K2), s(sA), v(K2)))
    a("s_and_b32 %s, %s, 0xfe" % (s(sA), s(sD)))
    a("v_bfe_u32 %s, %s, 2, 1" % (v(TT), v(vL)))
    a("v_add_u32 %s, %s, %s" % (v(TT), s(sA), v(TT)))
    a("v_cmp_le_u32 %s, 8, %s" % (s(sA, 2), v(K2)))
    a("v_cmp_eq_u32 vcc, 0, %s" % v(TT))
    a("s_and_b64 vcc, vcc, %s" % s(sA, 2))
    a("v_cndmask_b32 %s, %s, 20, vcc" % (v(TT), v(TT)))
    a("v_mad_u32_u24 %s, %s, 40, %s" % (v(KK), v(K2), v(TT)))
    a("v_sub_u32 %s, 640, %s" % (v(TT), v(KK)))
    a("v_cndmask_b32 %s, %s, %s, %s" % (v(KK), v(KK), v(TT), s(sA, 2)))
    a("v_cmp_eq_u32 vcc, 0, %s" % v(KK))
    a("v_mov_b32 %s, 320" % v(TT))
    a("v_cndmask_b32 %s, %s, %s, vcc" % (v(KK), v(KK), v(TT)))
    a("v_and_b32 %s, 3, %s" % (v(TT), v(vL)))
    a("v_mul_u32_u24 %s, 656, %s" % (v(TT), v(TT)))
    a("v_lshl_add_u32 %s, %s, 1, %s" % (v(KK), v(KK), v(TT)))
    a("s_bfe_u32 %s, %s, 0x30004" % (s(sA), s(sSIG)))
    a("s_lshl_b32 %s, %s, 1" % (s(sA), s(sA)))
    a("v_add_u32 %s, %s, %s" % (v(KK), s(sA), v(KK)))
    for arr in range(2):
        for i in range(4):
            a("ds_read_u16 %s, %s offset:%d" % (v(TM + 4 * arr + i), v(KK), L_WI + (arr * 16 + 4 * i) * 656))
    a("s_mul_i32 %s, %s, 20480" % (s(sA), s(sSIG)))
    a("s_lshl_b32 %s, %s, 10" % (s(sB), s(sD)))
    a("s_add_u32 %s, %s, %s" % (s(sA), s(sA), s(sB)))
    a("s_add_u32 %s, %s, 0x%x" % (s(sA), s(sA), WS_W))
    a("v_lshlrev_b32 %s, 4, %s" % (v(SV), v(vL)))
    a("s_waitcnt lgkmcnt(0)")
    for e in range(4):
        a("v_lshl_or_b32 %s, %s, 16, %s" % (v(OP + e), v(TM + 2 * e + 1), v(TM + 2 * e)))
    for e in range(4):
        a("v_bitop3_b32 %s, %s, %s, %s %s" % (v(OP + e), v(OP + e), v(vM1), v(SV + 1), B_TAG))
    a("buffer_store_dwordx4 %s, %s, %s, %s offen sc1" % (v(OP, 4), v(SV), s(SWS, 4), s(sA)))
    a("s_add_u32 %s, %s, 16" % (s(sD), s(sD)))
    a("s_cmp_lt_u32 %s, 20" % s(sD))
    a("s_cbranch_scc1 L_wt")
    stamp()
    a("s_mov_b32 %s, 0" % s(sL))
    a("s_cmp_ge_u32 %s, 20" % s(sRANK))
    a("s_cbranch_scc1 L_final")

    a.c("zero the two pad columns of the reduction table")
    a("v_mov_b32 %s, 0" % v(TM))
    a("v_mov_b32 %s, 0" % v(TM + 1))
    a("ds_write_b64 %s, %s offset:40" % (v(aRR), v(TM, 2)))
    a("L_layer:")
    a("buffer_load_dwordx2 %s, %s, %s, %s offen sc1" % (v(SV, 2), v(aS), s(SWS, 4), s(sSOFF)))
    a("s_waitcnt vmcnt(0)")
    a("v_bitop3_b32 %s, %s, %s, %s %s" % (v(TM), v(SV), v(SV + 1), v(vT), B_MIS2))
    a("v_and_b32 %s, 0xff, %s" % (v(TM), v(TM)))
    a("v_cmp_ne_u32 vcc, 0, %s" % v(TM))
    a("s_cbranch_vccz L_sok")
    retry("L_layer")
    a("L_sok:")
    a("s_cmp_lg_u32 %s, 0" % s(sL))
    a("s_cbranch_scc1 L_havex")
    a.c("first layer: gather this workgroup's two columns")
    a("v_lshrrev_b32 %s, 2, v0" % v(DR))
    a("v_mul_u32_u24 %s, 10240, %s" % (v(DR), v(DR)))
    a("v_and_b32 %s, 3, v0" % v(DR + 1))
    a("v_lshl_add_u32 %s, %s, 4, %s" % (v(DR), v(DR + 1), v(DR)))
    a("s_lshl_b32 %s, %s, 6" % (s(sD), s(sC)))
    a("s_add_u32 %s, %s, 0x%x" % (s(sD), s(sD), WS_X))
    a("L_xpoll:")
    a("buffer_load_dwordx4 %s, %s, %s, %s offen sc1" % (v(OP, 4), v(DR), s(SWS, 4), s(sD)))
    a("s_waitcnt vmcnt(0)")
    check4(OP, v(vM1), "L_xok")
    retry("L_xpoll")
    a("L_xok:")
    a("s_mov_b32 %s, 0xfffe0000" % s(sA))
    a("s_mov_b32 %s, 0xfffeffff" % s(sB))
    a("v_mov_b32 %s, 0x8000" % v(TM + 6))
    for e in range(4):
        unpack(OP + e, X + e, X + 4 + e)
    for e in range(8):
        a("v_mov_b32 %s, %s" % (v(XO + e), v(X + e)))
    stamp()
    a("L_havex:")
    a("s_cmp_ge_u32 %s, 2" % s(sL))
    a("s_cbranch_scc1 L_now")
    a("buffer_load_dwordx4 %s, %s, %s, %s offen sc1" % (v(WL, 4), v(aW), s(SWS, 4), s(sWOFF)))
    a("L_now:")
    a("v_and_b32 %s, 0xffffff00, %s" % (v(SV), v(SV)))
    a("v_and_b32 %s, 0xffffff00, %s" % (v(SV + 1), v(SV + 1)))
    for e in range(8):
        a("v_mul_f32 %s, %s, %s" % (v(TM + e), v(SV + ((e >> 1) & 1)), v(X + e)))
    pack(TM, TM + 4)
    a("v_mfma_f32_16x16x16_bf16 %s, %s, %s, 0" % (v(DR, 4), v(OP, 2), v(MA, 2)))
    a("v_mfma_f32_16x16x16_bf16 %s, %s, %s, 0" % (v(DI, 4), v(OP + 2, 2), v(MA, 2)))
    pack(DR, DI)
    a("ds_write_b64 %s, %s" % (v(aE1W), v(OP, 2)))
    a("ds_write_b64 %s, %s offset:%d" % (v(aE1W), v(OP + 2, 2), 16 * 520))
    barrier()
    a("ds_read_b64_tr_b16 %s, %s" % (v(OP, 2), v(aE1R)))
    a("ds_read_b64_tr_b16 %s, %s offset:520" % (v(OP + 2, 2), v(aE1R)))
    a("s_waitcnt lgkmcnt(0)")
    radix16(True, False)
    cmul(TF, TF + 4, -1)
    pack(TM, TM + 4)
    radix16(False, False)
    a("s_cmp_ge_u32 %s, 2" % s(sL))
    a("s_cbranch_scc1 L_wready")
    a("L_wpoll:")
    a("s_waitcnt vmcnt(0)")
    check4(WL, v(vM1), "L_wok")
    a("buffer_load_dwordx4 %s, %s, %s, %s offen sc1" % (v(WL, 4), v(aW), s(SWS, 4), s(sWOFF)))
    retry("L_wpoll")
    a("s_waitcnt vmcnt(0)")
    a("L_wok:")
    a("s_mov_b32 %s, 0xfffe0000" % s(sA))
    a("s_mov_b32 %s, 0xfffeffff" % s(sB))
    a("v_mov_b32 %s, 0x8000" % v(TM + 6))
    for e in range(4):
        unpack(WL + e, WC + 2 * e, WC + 2 * e + 1)
    a("s_add_u32 %s, %s, %d" % (s(sWOFF), s(sWOFF), 128 * 20480))
    a("L_wready:")
    cmul(WC, WC + 4, +1)
    pack(TM + 4, TM)
    radix16(True, True)
    cmul(TI, TI + 4, +1)
    pack(TM + 4, TM)
    radix16(True, True)
    pack(DR, DI)
    a("ds_write_b64 %s, %s" % (v(aE2W), v(OP, 2)))
    a("ds_write_b64 %s, %s offset:32" % (v(aE2W), v(OP + 2, 2)))
    barrier()
    a("ds_read_b64_tr_b16 %s, %s" % (v(OP, 2), v(aE2R)))
    a("ds_read_b64_tr_b16 %s, %s offset:512" % (v(OP + 2, 2), v(aE2R)))
    a("s_waitcnt lgkmcnt(0)")
    a("v_mfma_f32_16x16x16_bf16 %s, %s, %s, %s" % (v(X, 4), v(MI0, 2), v(OP, 2), v(X, 4)))
    a("v_mfma_f32_16x16x16_bf16 %s, %s, %s, %s" % (v(X + 4, 4), v(MI1, 2), v(OP + 2, 2), v(X + 4, 4)))
    a("s_cmp_eq_u32 %s, 3" % s(sL))
    a("s_cbranch_scc1 L_delta")
    a.c("partial sums of squares for two rows, sign bits carry the tag")
    a("s_mov_b32 %s, 0x80008000" % s(sA))
    a("v_mul_f32 %s, %s, %s" % (v(TM), v(X), v(X)))
    a("v_mul_f32 %s, %s, %s" % (v(TM + 1), v(X + 2), v(X + 2)))
    for e in (1, 4, 5):
        a("v_fmac_f32 %s, %s, %s" % (v(TM), v(X + e), v(X + e)))
        a("v_fmac_f32 %s, %s, %s" % (v(TM + 1), v(X + e + 2), v(X + e + 2)))
    a("v_cvt_pk_bf16_f32 %s, %s, %s" % (v(TM), v(TM), v(TM + 1)))
    a("v_bfi_b32 %s, %s, %s, %s" % (v(TM), s(sA), v(vT), v(TM)))
    a("buffer_store_dword %s, %s, %s, %s offen sc1" % (v(TM), v(aP), s(SWS, 4), s(sPOFF)))
    if stamps:
        a("s_cmp_lg_u32 %s, 0" % s(sL))
        a("s_cbranch_scc1 L_nst1")
        stamp()
        a("L_nst1:")
    for e in range(8):
        a("v_swap_b32 %s, %s" % (v(WC + e), v(WO + e)))
    a.c("selector matrix: row 0 sums low halves, row 1 high halves")
    a("v_lshlrev_b32 %s, 4, %s" % (v(DI), v(vN)))
    a("v_mov_b32 %s, 0x3f80" % v(DI + 1))
    a("v_lshlrev_b32 %s, %s, %s" % (v(DI + 1), v(DI), v(DI + 1)))
    a("v_cmp_gt_u32 vcc, 2, %s" % v(vN))
    a("v_mov_b32 %s, %s" % (v(SV), s(sA)))
    a("v_cndmask_b32 %s, 0, %s, vcc" % (v(DI), v(DI + 1)))
    a("v_mov_b32 %s, %s" % (v(DI + 1), v(DI)))
    a("v_mov_b32 %s, %s" % (v(DI + 2), v(DI)))
    a("v_mov_b32 %s, %s" % (v(DI + 3), v(DI)))
    a("s_waitcnt vmcnt(0)")
    a("s_barrier")
    a("s_cmp_ge_u32 %s, 10" % s(sW))
    a("s_cbranch_scc1 L_rskip")
    a("L_ppoll:")
    for e in range(4):
        a("buffer_load_dword %s, %s, %s, %s offen offset:%d sc1" % (v(OP + e), v(aG), s(SWS, 4), s(sPG), 256 * e))
    a("s_waitcnt vmcnt(0)")
    check4(OP, v(SV), "L_pok")
    retry("L_ppoll")
    a("L_pok:")
    a("v_mfma_f32_16x16x32_bf16 %s, %s, %s, 0" % (v(DR, 4), v(DI, 4), v(OP, 4)))
    a("s_bfm_b64 exec, 16, 0")
    a("ds_write2_b32 %s, %s, %s offset0:0 offset1:12" % (v(aRW), v(DR), v(DR + 1)))
    a("s_mov_b64 exec, -1")
    a("L_rskip:")
    barrier()
    a("s_cmp_ge_u32 %s, 4" % s(sW))
    a("s_cbranch_scc1 L_sskip")
    a("ds_read_b128 %s, %s" % (v(DR, 4), v(aRR)))
    a("ds_read_b128 %s, %s offset:16" % (v(DI, 4), v(aRR)))
    a("ds_read_b64 %s, %s offset:32" % (v(TM, 2), v(aRR)))
    a("v_and_b32 %s, 31, %s" % (v(SV), v(vL)))
    a("v_lshlrev_b32 %s, 2, %s" % (v(SV), v(SV)))
    a("v_lshrrev_b32 %s, 5, %s" % (v(SV + 1), v(vL)))
    a("v_lshl_add_u32 %s, %s, 13, %s" % (v(SV), v(SV + 1), v(SV)))
    a("v_mov_b32 %s, %s" % (v(TM + 2), fhex(1e-5 * 2048.0 ** 2)))
    a("s_mov_b32 %s, %s" % (s(sB), fhex(2 * 2048.0 ** 2 / 640.0 ** 2)))
    a("s_movk_i32 %s, 0xff" % s(sA))
    a("s_waitcnt lgkmcnt(0)")
    for e in range(4):
        a("v_add_f32 %s, %s, %s" % (v(DR + e), v(DR + e), v(DI + e)))
    a("v_add_f32 %s, %s, %s" % (v(TM), v(TM), v(TM + 1)))
    a("v_add_f32 %s, %s, %s" % (v(DR), v(DR), v(DR + 1)))
    a("v_add_f32 %s, %s, %s" % (v(DR + 2), v(DR + 2), v(DR + 3)))
    a("v_add_f32 %s, %s, %s" % (v(TM), v(TM), v(DR)))
    a("v_add_f32 %s, %s, %s" % (v(TM), v(TM), v(DR + 2)))
    a("v_fma_f32 %s, |%s|, %s, %s" % (v(TM), v(TM), s(sB), v(TM + 2)))
    a("v_rsq_f32 %s, %s" % (v(TM), v(TM)))
    a("v_bfi_b32 %s, %s, %s, %s" % (v(TM), s(sA), v(vT), v(TM)))
    a("buffer_store_dword %s, %s, %s, %s offen sc1" % (v(TM), v(SV), s(SWS, 4), s(sSST)))
    a("s_waitcnt vmcnt(0)")
    a("L_sskip:")
    a("s_add_u32 %s, %s, 1" % (s(sL), s(sL)))
    a("s_add_u32 %s, %s, 0x20000" % (s(sSOFF), s(sSOFF)))
    a("s_add_u32 %s, %s, 0x20000" % (s(sSST), s(sSST)))
    a("s_add_u32 %s, %s, %d" % (s(sPOFF), s(sPOFF), P_SZ))
    a("s_add_u32 %s, %s, %d" % (s(sPG), s(sPG), P_SZ))
    a("s_barrier")
    a("s_branch L_layer")

    a("L_delta:")
    a("s_lshl_b32 %s, %s, 14" % (s(sA), s(sC)))
    a("s_add_u32 %s, %s, 0x%x" % (s(sA), s(sA), WS_D))
    a("v_lshlrev_b32 %s, 4, v0" % v(SV))
    a("v_and_b32 %s, %s, %s" % (v(SV + 1), v(vT), v(vM1)))
    for e in range(8):
        a("v_sub_f32 %s, %s, %s" % (v(TM + e), v(X + e), v(XO + e)))
    a("s_mov_b32 %s, 0x07060302" % s(sB))
    for e in range(8):
        a("v_add_u32 %s, 0x10000, %s" % (v(TM + e), v(TM + e)))
    for e in range(4):
        a("v_perm_b32 %s, %s, %s, %s" % (v(OP + e), v(TM + 4 + e), v(TM + e), s(sB)))
    for e in range(4):
        a("v_bitop3_b32 %s, %s, %s, %s %s" % (v(OP + e), v(OP + e), v(vM1), v(SV + 1), B_TAG))
    a("buffer_store_dwordx4 %s, %s, %s, %s offen sc1" % (v(OP, 4), v(SV), s(SWS, 4), s(sA)))
    stamp()

    a("L_final:")
    a.c("inverse stage-1 matrix: lane = d1, K = (t, part)")
    a("s_lshr_b32 %s, %s, 2" % (s(sA), s(sW)))
    a("s_lshl_b32 %s, %s, 4" % (s(sA), s(sA)))
    a("v_add_u32 %s, %s, %s" % (v(DI), s(sA), v(vN)))
    a("v_cvt_f32_u32 %s, %s" % (v(F), v(DI)))
    a("v_mul_f32 %s, %s, %s" % (v(F), fhex(1 / 40), v(F)))
    a("v_add_f32 %s, %s, %s" % (v(A0), v(vGF), v(vGF)))
    a("v_mul_f32 %s, %s, %s" % (v(AMP), v(F), v(A0)))
    a("v_add_f32 %s, %s, %s" % (v(A0), v(AMP), v(AMP)))
    C6, S6 = 8, 14
    for e in range(4):
        ang(C6 + e, F, e, A0)
    ang(C6 + 4, F, 16, AMP)
    ang(C6 + 5, F, 17, AMP)
    for e in range(6):
        a("v_sin_f32 %s, %s" % (v(S6 + e), v(C6 + e)))
    for e in range(6):
        a("v_cos_f32 %s, %s" % (v(C6 + e), v(C6 + e)))
    a("v_cndmask_b32 %s, -1.0, 1.0, %s" % (v(TM), s(sM + 2, 2)))
    a("v_cmp_eq_u32 vcc, 0, %s" % v(vG))
    a("v_cndmask_b32 %s, %s, %s, vcc" % (v(S6), v(S6), v(TM)))
    for e in range(6):
        a("v_cvt_pk_bf16_f32 %s, %s, -%s" % (v(S1I + e), v(C6 + e), v(S6 + e)))
    a("v_cndmask_b32 %s, %s, 0, %s" % (v(S1I + 6), v(S1I + 4), s(sM, 2)))
    a("v_cndmask_b32 %s, %s, 0, %s" % (v(S1I + 7), v(S1I + 5), s(sM, 2)))
    a("v_mov_b32 %s, 0" % v(S1I + 4))
    a("v_mov_b32 %s, 0" % v(S1I + 5))
    a("s_cmp_ge_u32 %s, 10" % s(sW))
    a("s_cbranch_scc1 L_fcdone")
    a.c("inverse stage-2 matrices: lane = d2, K = (k2, tile)")
    a("v_mul_f32 %s, %s, %s" % (v(F), fhex(1 / 640), v(vNF)))
    a("s_lshl_b32 %s, %s, 1" % (s(sA), s(sW)))
    a("v_cvt_f32_u32 %s, %s" % (v(A0), s(sA)))
    a("v_fmamk_f32 %s, %s, %s, %s" % (v(A0), v(vGF), fhex(160), v(A0)))
    a("v_mul_f32 %s, %s, %s" % (v(A0), v(F), v(A0)))
    C8, S8 = 8, 16
    for e in range(4):
        ang(C8 + 4 + e, F, 40 * e + 1, A0)
    a("v_mov_b32 %s, 0xfffefffe" % v(mP))
    a("v_mov_b32 %s, 0xfffefffe" % v(mQ))
    a("v_mov_b32 %s, 1.0" % v(AMP))
    a("v_mov_b32 %s, %s" % (v(C8), v(A0)))
    a("s_cmp_lg_u32 %s, 0" % s(sW))
    a("s_cbranch_scc1 L_fcn")
    a("v_mov_b32 %s, 0x3e800000" % v(TM))
    a("v_fmamk_f32 %s, %s, %s, %s" % (v(TM), v(F), fhex(20), v(TM)))
    a("v_cndmask_b32 %s, 0, %s, %s" % (v(TM), v(TM), s(sM, 2)))
    a("v_add_f32 %s, %s, %s" % (v(A0), v(A0), v(TM)))
    a("v_mul_f32 %s, 0.5, %s" % (v(TM), v(vNF)))
    a("v_cndmask_b32 %s, %s, %s, vcc" % (v(C8), v(A0), v(TM)))
    a("v_mov_b32 %s, %s" % (v(TM), fhex(0.5 ** 0.5)))
    a("v_cndmask_b32 %s, %s, %s, vcc" % (v(AMP), v(AMP), v(TM)))
    a("s_xor_b64 vcc, %s, %s" % (s(sM, 2), s(sM + 2, 2)))
    a("v_mov_b32 %s, 0xfffe0000" % v(TM))
    a("v_cndmask_b32 %s, %s, %s, vcc" % (v(mQ), v(TM), v(mQ)))
    a("v_cndmask_b32 %s, %s, %s, vcc" % (v(mP), v(mP), v(TM)))
    a("L_fcn:")
    for e in range(1, 4):
        ang(C8 + e, F, 40 * e, A0)
    for e in range(8):
        a("v_sin_f32 %s, %s" % (v(S8 + e), v(C8 + e)))
    for e in range(8):
        a("v_cos_f32 %s, %s" % (v(C8 + e), v(C8 + e)))
    a("v_mul_f32 %s, %s, %s" % (v(C8), v(AMP), v(C8)))
    for e in range(4):
        a("v_cvt_pk_bf16_f32 %s, %s, 0" % (v(PQ + e), v(C8 + e)))
        a("v_cvt_pk_bf16_f32 %s, %s, 0" % (v(PQ + 4 + e), v(S8 + e)))
        a("v_cvt_pk_bf16_f32 %s, 0, %s" % (v(PQ + 8 + e), v(C8 + 4 + e)))
        a("v_cvt_pk_bf16_f32 %s, 0, %s" % (v(PQ + 12 + e), v(S8 + 4 + e)))
    a("L_fcdone:")
    a.c("message c = tp*16 + i*4 + g, dword n")
    a("v_lshlrev_b32 %s, 14, %s" % (v(SV), v(vG)))
    a("v_lshl_add_u32 %s, %s, 2, %s" % (v(SV), v(vN), v(SV)))
    a("s_lshl_b32 %s, %s, 6" % (s(sE), s(sRHO)))
    a("s_add_u32 %s, %s, 0x%x" % (s(sE), s(sE), WS_D))
    a("s_cmp_lt_u32 %s, 20" % s(sRANK))
    a("s_cbranch_scc1 L_fgo")
    a("s_cmp_lg_u32 %s, 0" % s(sW))
    a("s_cbranch_scc1 L_fgo")
    a.c("workgroups without columns watch a single message until the last layer is out")
    a("s_and_b32 %s, %s, 127" % (s(sA), s(sRHO)))
    a("s_lshl_b32 %s, %s, 14" % (s(sA), s(sA)))
    a("s_add_u32 %s, %s, %s" % (s(sA), s(sA), s(sE)))
    a("v_lshlrev_b32 %s, 2, %s" % (v(SV + 1), v(vN)))
    a("L_canary:")
    a("buffer_load_dword %s, %s, %s, %s offen sc1" % (v(TM), v(SV + 1), s(SWS, 4), s(sA)))
    a("s_waitcnt vmcnt(0)")
    a("v_bitop3_b32 %s, %s, %s, %s %s" % (v(TM), v(TM), v(vT), v(vM1), bitop(lambda d, t, m: (d ^ t) & m)))
    a("v_cmp_ne_u32 vcc, 0, %s" % v(TM))
    a("s_cbranch_vccz L_fgo")
    retry("L_canary")
    a("L_fgo:")
    a("s_waitcnt vmcnt(0)")
    a("s_barrier")
    stamp()
    a("s_cmp_ge_u32 %s, 10" % s(sW))
    a("s_cbranch_scc1 L_f2done")
    a("s_lshl_b32 %s, %s, 18" % (s(sA), s(sW)))
    a("s_add_u32 %s, %s, %s" % (s(sA), s(sA), s(sE)))
    a("s_add_u32 %s, %s, 0x10000" % (s(sB), s(sA)))
    a("s_add_u32 %s, %s, 0x20000" % (s(sD), s(sA)))
    a("s_add_u32 %s, %s, 0x30000" % (s(sE), s(sA)))
    a("L_dpoll:")
    for e, so in enumerate((sA, sB, sD, sE)):
        a("buffer_load_dword %s, %s, %s, %s offen sc1" % (v(OP + e), v(SV), s(SWS, 4), s(so)))
    a("s_waitcnt vmcnt(0)")
    check4(OP, v(vM1), "L_dok")
    retry("L_dpoll")
    a("L_dok:")
    for e in range(4):
        a("v_bitop3_b32 %s, %s, %s, %s %s" % (v(TM + e), v(OP + e), v(mP), v(mS), B_ANDX))
    for e in range(4):
        a("v_bitop3_b32 %s, %s, %s, %s %s" % (v(TM + 4 + e), v(OP + e), v(mQ), v(mS), B_ANDX))
    P0, Q0, P1, Q1 = 8, 12, 16, 20
    a("v_mfma_f32_16x16x32_bf16 %s, %s, %s, 0" % (v(P0, 4), v(TM, 4), v(PQ, 4)))
    a("v_mfma_f32_16x16x32_bf16 %s, %s, %s, 0" % (v(Q0, 4), v(TM + 4, 4), v(PQ + 4, 4)))
    a("v_mfma_f32_16x16x32_bf16 %s, %s, %s, 0" % (v(P1, 4), v(TM, 4), v(PQ + 8, 4)))
    a("v_mfma_f32_16x16x32_bf16 %s, %s, %s, 0" % (v(Q1, 4), v(TM + 4, 4), v(PQ + 12, 4)))
    a.c("U address: row*1280 + d2*80 + tp*8, rows 2g and 2g+1")
    a("v_mul_u32_u24 %s, 80, %s" % (v(SV), v(vN)))
    a("v_mul_u32_u24 %s, 2560, %s" % (v(SV + 1), v(vG)))
    a("s_lshl_b32 %s, %s, 3" % (s(sA), s(sW)))
    a("s_add_u32 %s, %s, %d" % (s(sA), s(sA), L_TB))
    a("v_add3_u32 %s, %s, %s, %s" % (v(SV), v(SV), v(SV + 1), s(sA)))
    for k, (p, q) in enumerate(((P0, Q0), (P1, Q1))):
        for r in range(2):
            a("v_sub_f32 %s, %s, %s" % (v(p + 2 * r), v(p + 2 * r), v(q + 2 * r + 1)))
            a("v_add_f32 %s, %s, %s" % (v(p + 2 * r + 1), v(p + 2 * r + 1), v(q + 2 * r)))
        for r in range(2):
            a("v_cvt_pk_bf16_f32 %s, %s, %s" % (v(OP + 2 * r + k), v(p + 2 * r), v(p + 2 * r + 1)))
    a("ds_write_b64 %s, %s" % (v(SV), v(OP, 2)))
    a("ds_write_b64 %s, %s offset:1280" % (v(SV), v(OP + 2, 2)))
    a("L_f2done:")
    barrier()
    stamp()
    a("s_cmp_ge_u32 %s, 12" % s(sW))
    a("s_cbranch_scc1 L_fin")
    a("s_and_b32 %s, %s, 3" % (s(sD), s(sW)))
    a("s_mul_i32 %s, %s, 2560" % (s(sA), s(sD)))
    a("s_add_u32 %s, %s, %d" % (s(sA), s(sA), L_TB))
    a("v_mul_u32_u24 %s, 80, %s" % (v(SV), v(vN)))
    a("v_add_u32 %s, %s, %s" % (v(SV), s(sA), v(SV)))
    a("v_and_b32 %s, 1, %s" % (v(SV + 1), v(vG)))
    a("v_lshl_add_u32 %s, %s, 3, %s" % (v(SV + 1), v(SV + 1), v(SV)))
    a("v_lshl_add_u32 %s, %s, 4, %s" % (v(SV), v(vG), v(SV)))
    for r, dst in ((0, 8), (1280, 16)):
        a("ds_read_b128 %s, %s offset:%d" % (v(dst, 4), v(SV), r))
        a("ds_read_b64 %s, %s offset:%d" % (v(dst + 4, 2), v(SV + 1), r + 64))
    a.c("x / out offset inside the row: d1*32 + g*8")
    a("s_lshr_b32 %s, %s, 2" % (s(sA), s(sW)))
    a("s_lshl_b32 %s, %s, 4" % (s(sA), s(sA)))
    a("v_add_u32 %s, %s, %s" % (v(24), s(sA), v(vN)))
    a("v_cmp_gt_u32 vcc, 40, %s" % v(24))
    a("v_min_u32 %s, 39, %s" % (v(24), v(24)))
    a("v_lshlrev_b32 %s, 5, %s" % (v(24), v(24)))
    a("v_lshl_add_u32 %s, %s, 3, %s" % (v(24), v(vG), v(24)))
    a("s_mul_i32 %s, %s, 1280" % (s(sA), s(sD)))
    a("v_add_u32 %s, %s, %s" % (v(24), s(sA), v(24)))
    a("ds_read_b64 %s, %s" % (v(26, 2), v(24)))
    a("ds_read_b64 %s, %s offset:5120" % (v(28, 2), v(24)))
    a("s_add_u32 %s, %s, %d" % (s(sB), s(sROWB), 256 * 1280))
    a("s_mov_b32 %s, %s" % (s(sA), fhex(1 / 320)))
    a("s_waitcnt lgkmcnt(0)")
    for src, d in ((8, DR), (16, DI)):
        a("v_mfma_f32_16x16x32_bf16 %s, %s, %s, 0" % (v(d, 4), v(src, 4), v(S1I, 4)))
        a("v_mfma_f32_16x16x32_bf16 %s, %s, %s, %s" % (v(d, 4), v(src + 2, 4), v(S1I + 4, 4), v(d, 4)))
    for e in range(4):
        a("v_lshlrev_b32 %s, 16, %s" % (v(TM + 2 * e), v(26 + e)))
        a("v_and_b32 %s, 0xffff0000, %s" % (v(TM + 2 * e + 1), v(26 + e)))
    for e in range(8):
        a("v_fmac_f32 %s, %s, %s" % (v(TM + e), s(sA), v(DR + e)))
    pack(TM, TM + 4)
    a("s_and_b64 exec, exec, vcc")
    a("buffer_store_dwordx2 %s, %s, %s, %s offen" % (v(OP, 2), v(24), s(SO, 4), s(sROWB)))
    a("buffer_store_dwordx2 %s, %s, %s, %s offen" % (v(OP + 2, 2), v(24), s(SO, 4), s(sB)))
    a("s_mov_b64 exec, -1")
    a("L_fin:")
    a.c("the next launch tags its hand-offs with the complement of this word")
    a("s_lshl_b32 %s, s2, 4" % s(sA))
    a("s_add_u32 %s, %s, %s" % (s(sA), s(sA), s(sW)))
    a("s_cmp_lg_u32 %s, 15" % s(sA))
    a("s_cbranch_scc1 L_noe")
    a("v_mov_b32 %s, 0x%x" % (v(SV), WS_E))
    a("buffer_store_dword %s, %s, %s, 0 offen sc1" % (v(vT), v(SV), s(SWS, 4)))
    a("L_noe:")
    if stamps:
        a("s_waitcnt vmcnt(0)")
        stamp()
        a("s_waitcnt lgkmcnt(0)")
        a("s_lshl_b32 %s, %s, 6" % (s(sA), s(sA)))
        a("s_add_u32 %s, %s, 0x%x" % (s(sA), s(sA), WS_T))
        a("v_mov_b32 %s, 0" % v(SV))
        for k in range(nst[0]):
            a("v_mov_b32 %s, %s" % (v(TM), s(sST + 2 * k)))
            a("buffer_store_dword %s, %s, %s, %s offen offset:%d" % (v(TM), v(SV), s(SWS, 4), s(sA), 4 * k))
        a("v_mov_b32 %s, %s" % (v(TM), s(sSPIN)))
        a("buffer_store_dword %s, %s, %s, %s offen offset:60" % (v(TM), v(SV), s(SWS, 4), s(sA)))
    if "hold" in opt:
        k = opt["hold"]
        a("s_cmp_lg_u32 s2, 0")
        a("s_cbranch_scc1 L_end")
        a("s_cmp_lg_u32 %s, 0" % s(sW))
        a("s_cbranch_scc1 L_end")
        a("s_sub_u32 %s, %s, %s" % (s(sA), s(sST + 2 * k), s(sST)))
        a("s_add_u32 %s, %s, 4000" % (s(sA), s(sA)))
        a("s_min_u32 %s, %s, 20000" % (s(sA), s(sA)))
        a("L_hold:")
        a("s_memrealtime %s" % s(sD, 2))
        a("s_waitcnt lgkmcnt(0)")
        a("s_sub_u32 %s, %s, %s" % (s(sB), s(sD), s(sST)))
        a("s_cmp_lt_u32 %s, %s" % (s(sB), s(sA)))
        a("s_cbranch_scc1 L_hold")
    a("L_end:")
    a("s_endpgm")

    head = open("interleave_layers__spectral_gfnet__spectral_gfnet__prompt.s.ref").read()
    head = "".join(l + "\n" for l in head.split("\n") if l.startswith(";") and "@launch" not in l)
    out = head
    out += "; @launch grid=(256,1,1) block=(1024,1,1) lds=%d\n" % L_END
    out += '.amdgcn_target "amdgcn-amd-amdhsa--gfx950"\n.text\n.globl %s\n.p2align 8\n.type %s,@function\n%s:\n' % (
        NAME, NAME, NAME)
    out += a.text()
    out += ".p2align 8\n.fill 1024, 4, 0xbf810000\n"
    out += """.section .rodata,"a"
.p2align 6
.amdhsa_kernel %s
  .amdhsa_next_free_vgpr %d
  .amdhsa_next_free_sgpr 102
  .amdhsa_accum_offset %d
  .amdhsa_group_segment_fixed_size 0
  .amdhsa_kernarg_size 72
  .amdhsa_user_sgpr_count 2
  .amdhsa_user_sgpr_kernarg_segment_ptr 1
  .amdhsa_system_sgpr_workgroup_id_x 1
.end_amdhsa_kernel
""" % (NAME, NV, NV)
    return out


if __name__ == "__main__":
    dst = sys.argv[1]
    opt = {}
    for x in sys.argv[2:]:
        if "=" in x:
            k_, v_ = x.split("=")
            opt[k_] = int(v_)
    open(dst, "w").write(gen(stamps="stamps" in sys.argv[2:], opt=opt))
```

```python
import sys
from asmlib import Asm, v, s, fhex, bitop

NAME = "interleave_layers__spectral_gfnet__spectral_gfnet__prompt_kernel"

WS_E = 0
WS_S = 0x10000
WS_S0 = 0xA0000
WS_P = 0x100000
P_SZ = 655360
WS_X = 0x300000
WS_D = 0x600000
WS_W = 0x900000
WS_T = 0xF00000
WS_SIZE = 0x1000000

L_XI = 0
L_TB = 10240
L_RED = L_TB + 12672
L_S0 = L_RED + 1536
L_E1 = L_S0 + 64
L_E2 = L_E1 + 16640
L_WI = L_E1
WBUF = 20992
L_END = L_WI + 3 * WBUF

SPIN = 1 << 17

SX, SWS, SO, SWR, SWI = 4, 8, 12, 16, 20
sW, sRHO, sC, sT, sL, sSPIN = 24, 25, 26, 27, 28, 29
sA, sB, sD, sE = 30, 31, 32, 33
sRANK, sROWB = 34, 35
sK = 36
sSOFF, sPOFF, sWOFF, sSIG, sSST, sPG = 54, 55, 56, 57, 58, 59
sM = 60
sU0, sU1, sKS, sFF, sROLE = 64, 65, 66, 67, 3
sST = 68

vTID, vL, vN, vG, vNF, vGF = 0, 1, 2, 3, 4, 5
vT = 6
vM1 = 7
X = 8
XP = 16
SEL = 20
WC = 24
WO = 32
TF = 40
TI = 48
FM = 56
MA, MI0, MI1 = 62, 64, 66
DR, DI = 68, 72
TM = 76
OP = 84
SV = 88
aS, aP, aG, aE1W, aE1R, aE2W, aE2R, aRW, aRR, aW = 90, 91, 92, 93, 94, 95, 96, 97, 98, 99
PQ = 100
S1I = 116
mP, mQ, mS, aSS = 124, 125, 126, 127
WL = 100
S1B = 8
M0A, M0B, M1 = 16, 20, 24
NV = 128

B_TAG = bitop(lambda d, m, t: (d & ~m) ^ t)
B_ANDX = bitop(lambda d, m, t: (d & m) ^ t)
B_MIS2 = bitop(lambda a, b, t: (a ^ t) | (b ^ t))
B_ORAND = bitop(lambda a, b, m: (a | b) & m)
B_INS = bitop(lambda d, m, t: (d & ~m) | (t & m))


def gen(stamps=False, opt=None):
    opt = opt or {}
    a = Asm()
    nst = [0]
    names = []

    def stamp(name="", grp=0):
        if stamps and grp == opt.get("grp", 0):
            a("%s %s" % ("s_memtime" if grp else "s_memrealtime", s(sST + 2 * nst[0], 2)))
            nst[0] += 1
            names.append(name)

    def srd(d, ptr, nbytes):
        a("s_mov_b64 %s, %s" % (s(d, 2), s(ptr, 2)))
        a("s_mov_b32 %s, 0x%x" % (s(d + 2), nbytes))
        a("s_mov_b32 %s, 0x00020000" % s(d + 3))

    def ang(dst, f, off, a0):
        if off == 1:
            a("v_add_f32 %s, %s, %s" % (v(dst), v(f), v(a0)))
        elif off != 0:
            a("v_fmamk_f32 %s, %s, %s, %s" % (v(dst), v(f), fhex(off), v(a0)))
        return dst if off else a0

    def cosrow(dst, f, a0, offs, tmp, amp=None):
        for base in range(0, len(offs), 8):
            o = offs[base:base + 8]
            src = [ang(tmp + e, f, off, a0) for e, off in enumerate(o)]
            for e in range(len(o)):
                a("v_cos_f32 %s, %s" % (v(tmp + e), v(src[e])))
            if amp is not None:
                for e in range(len(o)):
                    a("v_mul_f32 %s, %s, %s" % (v(tmp + e), v(amp), v(tmp + e)))
            for e in range(0, len(o), 2):
                a("v_cvt_pk_bf16_f32 %s, %s, %s" % (v(dst + (base + e) // 2), v(tmp + e), v(tmp + e + 1)))

    def sincos(cs, sn, f, a0, offs):
        src = [ang(cs + e, f, off, a0) for e, off in enumerate(offs)]
        for e in range(len(offs)):
            a("v_sin_f32 %s, %s" % (v(sn + e), v(src[e])))
        for e in range(len(offs)):
            a("v_cos_f32 %s, %s" % (v(cs + e), v(src[e])))

    def retry(loop):
        a("s_add_u32 %s, %s, 1" % (s(sSPIN), s(sSPIN)))
        a("s_cmp_lt_u32 %s, 0x%x" % (s(sSPIN), SPIN))
        a("s_cbranch_scc1 %s" % loop)

    def check4(r, mask, done):
        a("v_bitop3_b32 %s, %s, %s, %s %s" % (v(TM), v(r), v(r + 1), v(vT), B_MIS2))
        a("v_bitop3_b32 %s, %s, %s, %s %s" % (v(TM + 1), v(r + 2), v(r + 3), v(vT), B_MIS2))
        a("v_bitop3_b32 %s, %s, %s, %s %s" % (v(TM), v(TM), v(TM + 1), mask, B_ORAND))
        a("v_cmp_ne_u32 vcc, 0, %s" % v(TM))
        a("s_cbranch_vccz %s" % done)

    def unpack4(src, lo, hi):
        a("v_mov_b32 %s, 0x8000" % v(TM + 6))
        a("v_mov_b32 %s, 0xfffe0000" % v(TM + 7))
        for e in range(4):
            a("v_lshlrev_b32 %s, 16, %s" % (v(lo(e)), v(src + e)))
        for e in range(4):
            a("v_bitop3_b32 %s, %s, %s, %s %s" % (v(hi(e)), v(src + e), v(TM + 7), v(TM + 6), B_ANDX))
        for e in range(4):
            a("v_bitop3_b32 %s, %s, %s, %s %s" % (v(lo(e)), v(lo(e)), v(TM + 7), v(TM + 6), B_ANDX))

    def cmul(c, sn, sign):
        for i in range(4):
            a("v_mul_f32 %s, %s, %s" % (v(TM + i), v(c + i), v(DR + i)))
        for i in range(4):
            a("v_mul_f32 %s, %s%s, %s" % (v(TM + 4 + i), "" if sign > 0 else "-", v(sn + i), v(DR + i)))
        for i in range(4):
            if sign > 0:
                a("v_fma_f32 %s, -%s, %s, %s" % (v(TM + i), v(sn + i), v(DI + i), v(TM + i)))
            else:
                a("v_fmac_f32 %s, %s, %s" % (v(TM + i), v(sn + i), v(DI + i)))
        for i in range(4):
            a("v_fmac_f32 %s, %s, %s" % (v(TM + 4 + i), v(c + i), v(DI + i)))

    def pack(first, second):
        a("v_cvt_pk_bf16_f32 %s, %s, %s" % (v(OP), v(first), v(first + 1)))
        a("v_cvt_pk_bf16_f32 %s, %s, %s" % (v(OP + 1), v(first + 2), v(first + 3)))
        a("v_cvt_pk_bf16_f32 %s, %s, %s" % (v(OP + 2), v(second), v(second + 1)))
        a("v_cvt_pk_bf16_f32 %s, %s, %s" % (v(OP + 3), v(second + 2), v(second + 3)))

    FRE, FIM = v(FM + 2, 4), v(FM, 4)

    def radix16(data_is_a, inverse):
        m_re, m_im = (FIM, FRE) if inverse else (FRE, FIM)
        for d, m in ((DR, m_re), (DI, m_im)):
            ab = (v(OP, 4), m) if data_is_a else (m, v(OP, 4))
            a("v_mfma_f32_16x16x32_bf16 %s, %s, %s, 0" % (v(d, 4), ab[0], ab[1]))

    def barrier():
        a("s_waitcnt lgkmcnt(0)")
        a("s_barrier")

    def wload(buf):
        a("s_cmp_ge_u32 %s, 128" % s(sSIG))
        a("s_cselect_b64 %s, %s, %s" % (s(SWR, 2), s(sK + 8, 2), s(sK + 2, 2)))
        a("s_cselect_b64 %s, %s, %s" % (s(SWI, 2), s(sK + 10, 2), s(sK + 4, 2)))
        a("s_bfe_u32 %s, %s, 0x30004" % (s(sA), s(sSIG)))
        a("s_add_u32 %s, %s, %s" % (s(sA), s(sA), s(sU0)))
        a("s_and_b32 %s, %s, 3" % (s(sB), s(sSIG)))
        a("s_lshl_b32 %s, %s, 5" % (s(sB), s(sB)))
        a("s_add_u32 %s, %s, %s" % (s(sA), s(sA), s(sB)))
        a("s_and_b32 %s, %s, 12" % (s(sB), s(sSIG)))
        a("s_lshl_b32 %s, %s, 7" % (s(sB), s(sB)))
        a("s_add_u32 %s, %s, %s" % (s(sA), s(sA), s(sB)))
        a("s_mul_i32 %s, %s, 642" % (s(sA), s(sA)))
        a("s_add_u32 m0, %s, %d" % (s(sU1), L_WI + buf * WBUF))
        a("s_and_b32 %s, %s, 0xfffffff0" % (s(sA), s(sA)))
        a("buffer_load_dwordx4 %s, %s, %s offen lds" % (v(aW), s(SWR, 4), s(sA)))
        a("s_add_u32 m0, %s, %d" % (s(sU1), L_WI + buf * WBUF + 16 * 656))
        a("buffer_load_dwordx4 %s, %s, %s offen lds" % (v(aW), s(SWI, 4), s(sA)))

    F, A0, AMP, T8 = DR, DR + 1, DR + 2, TM

    a("s_cmp_ge_u32 s2, 256")
    a("s_cbranch_scc1 L_end")
    a("s_load_dwordx16 %s, s[0:1], 0" % s(sK, 16))
    a("s_load_dwordx2 %s, s[0:1], 64" % s(sK + 16, 2))
    stamp("start")
    a("v_lshrrev_b32 %s, 6, v0" % v(TM))
    a("v_and_b32 %s, 63, v0" % v(vL))
    a("v_readfirstlane_b32 %s, %s" % (s(sW), v(TM)))
    a("s_and_b32 %s, s2, 7" % s(sD))
    a("s_lshr_b32 %s, s2, 3" % s(sRANK))
    a("s_cmp_lt_u32 s2, 160")
    a("s_cselect_b32 %s, 1, 0" % s(sROLE))
    a("s_cmp_lt_u32 %s, 14" % s(sW))
    a("s_cbranch_scc1 L_nopf")
    a.c("pull the kernel's code into L2")
    a("s_getpc_b64 %s" % s(sA, 2))
    a("s_and_b32 %s, %s, 0xffffff00" % (s(sA), s(sA)))
    a("v_and_b32 %s, 127, v0" % v(TM))
    a("v_min_u32 %s, %d, %s" % (v(TM), opt.get("pfl", 68), v(TM)))
    a("v_lshlrev_b32 %s, 7, %s" % (v(TM), v(TM)))
    a("v_mov_b32 %s, 0" % v(TM + 1))
    a("v_lshl_add_u64 %s, %s, 0, %s" % (v(TM, 2), v(TM, 2), s(sA, 2)))
    a("global_load_dword %s, %s, off" % (v(TM + 2), v(TM, 2)))
    a("L_nopf:")
    a("s_lshl_b32 %s, %s, 5" % (s(sRHO), s(sD)))
    a("s_add_u32 %s, %s, %s" % (s(sRHO), s(sRHO), s(sRANK)))
    a.c("first row = 512*g + 16*n1 + 4*a with rho = (n1*4+g)*4+a")
    a("s_and_b32 %s, %s, 12" % (s(sA), s(sRHO)))
    a("s_lshl_b32 %s, %s, 7" % (s(sA), s(sA)))
    a("s_and_b32 %s, %s, 0xf0" % (s(sB), s(sRHO)))
    a("s_add_u32 %s, %s, %s" % (s(sA), s(sA), s(sB)))
    a("s_and_b32 %s, %s, 3" % (s(sB), s(sRHO)))
    a("s_lshl2_add_u32 %s, %s, %s" % (s(sA), s(sB), s(sA)))
    a("s_mul_i32 %s, %s, 1280" % (s(sROWB), s(sA)))
    a("s_lshl_b32 m0, %s, 10" % s(sW))
    a("s_cmp_ge_u32 %s, 5" % s(sW))
    a("s_cselect_b32 %s, %d, 0" % (s(sB), 256 * 1280 - 5120))
    a("s_add_u32 %s, %s, %s" % (s(sA), s(sB), s(sROWB)))
    a("v_lshlrev_b32 %s, 4, v0" % v(SV))
    a("v_lshlrev_b32 %s, 4, %s" % (v(aW), v(vL)))
    a("s_mov_b32 %s, 2621440" % s(SX + 2))
    a("s_mov_b32 %s, 0x00020000" % s(SX + 3))
    a("s_cmp_ge_u32 %s, 10" % s(sW))
    a("s_waitcnt lgkmcnt(0)")
    a("s_mov_b64 %s, %s" % (s(SX, 2), s(sK, 2)))
    a("s_cbranch_scc1 L_nox")
    a("buffer_load_dwordx4 %s, %s, %s offen lds" % (v(SV), s(SX, 4), s(sA)))
    a("L_nox:")
    a("s_load_dword %s, %s, 0x%x" % (s(sT), s(sK + 16, 2), WS_E))
    for d in (SWR, SWI):
        a("s_mov_b32 %s, %d" % (s(d + 2), 2048 * 642))
        a("s_mov_b32 %s, 0x00020000" % s(d + 3))
    def wload01():
        a("s_cmp_eq_u32 %s, 1" % s(sROLE))
        a("s_cbranch_scc1 L_now0")
        a.c("W row p = q + 8*(4*kq+kk) + 128*(4*g+i); task = (AB,q,g,kq), wave = (i,kk)")
        a("s_and_b32 %s, %s, 3" % (s(sU0), s(sW)))
        a("s_lshl_b32 %s, %s, 3" % (s(sU0), s(sU0)))
        a("s_and_b32 %s, %s, 12" % (s(sA), s(sW)))
        a("s_lshl_b32 %s, %s, 5" % (s(sA), s(sA)))
        a("s_add_u32 %s, %s, %s" % (s(sU0), s(sU0), s(sA)))
        a("s_mul_i32 %s, %s, 656" % (s(sU1), s(sW)))
        a("s_bfm_b64 exec, 41, 0")
        a("s_sub_u32 %s, s2, 160" % s(sSIG))
        wload(0)
        a("s_sub_u32 %s, s2, 64" % s(sSIG))
        wload(1)
        a("s_mov_b64 exec, -1")
        a("L_now0:")

    wlate = opt.get("wlate", 1)
    if not wlate:
        wload01()
    srd(SWS, sK + 16, WS_SIZE)
    srd(SO, sK + 12, 2621440)
    a("s_mov_b32 %s, 0" % s(sSPIN))
    a("v_and_b32 %s, 15, %s" % (v(vN), v(vL)))
    a("v_lshrrev_b32 %s, 4, %s" % (v(vG), v(vL)))
    a("v_cvt_f32_u32 %s, %s" % (v(vNF), v(vN)))
    a("v_cvt_f32_u32 %s, %s" % (v(vGF), v(vG)))
    a("v_mov_b32 %s, 0x00010001" % v(vM1))
    a.c("s[60:61] = lanes with g >= 2; s[62:63] = odd lanes")
    a("s_bfm_b64 %s, 32, 32" % s(sM, 2))
    a("s_mov_b32 %s, 0xaaaaaaaa" % s(sM + 2))
    a("s_mov_b32 %s, %s" % (s(sM + 3), s(sM + 2)))
    a("s_mov_b32 %s, 0x80008000" % s(sKS))
    a("s_movk_i32 %s, 0x3fff" % s(sFF))
    a.c("sign mask: odd lanes with g >= 2")
    a("s_and_b64 %s, %s, %s" % (s(sA, 2), s(sM, 2), s(sM + 2, 2)))
    a("v_mov_b32 %s, %s" % (v(mS), s(sKS)))
    a("v_cndmask_b32 %s, 0, %s, %s" % (v(mS), v(mS), s(sA, 2)))
    a("v_mov_b32 %s, 0x3e800000" % v(DI + 1))
    a("s_and_b32 %s, %s, 3" % (s(sE), s(sW)))

    aT1, aT2, aX1, aX2 = aE1W, aE1R, aE2W, aE2R
    a("s_mul_i32 %s, %s, 1280" % (s(sA), s(sE)))
    a("v_lshl_add_u32 %s, %s, 3, %s" % (v(aX1), v(vL), s(sA)))
    a("v_and_b32 %s, 31, %s" % (v(aX2), v(vL)))
    a("v_lshl_add_u32 %s, %s, 3, %s" % (v(aX2), v(aX2), s(sA)))
    a("s_cmp_ge_u32 %s, 12" % s(sW))
    a("s_cbranch_scc1 L_c2done")
    a.c("stage-1 matrix: lane = output index, K = d1")
    a("s_and_b32 %s, %s, 12" % (s(sA), s(sW)))
    a("s_lshl_b32 %s, %s, 2" % (s(sA), s(sA)))
    a("v_add_u32 %s, %s, %s" % (v(DI), s(sA), v(vN)))
    a("v_cmp_eq_u32 %s, 1, %s" % (s(sA, 2), v(DI)))
    a("v_lshrrev_b32 %s, 1, %s" % (v(F), v(DI)))
    a.c("T address: t*528 + row*64 + part*32 + g*8")
    a("v_mul_u32_u24 %s, %d, %s" % (v(aT1), 528 - 64, v(F)))
    a("v_lshl_add_u32 %s, %s, 5, %s" % (v(aT1), v(DI), v(aT1)))
    a("v_lshl_add_u32 %s, %s, 3, %s" % (v(aT1), v(vG), v(aT1)))
    a("v_cndmask_b32 %s, %s, 20, %s" % (v(F), v(F), s(sA, 2)))
    a("s_andn2_b64 %s, %s, %s" % (s(sA, 2), s(sM + 2, 2), s(sA, 2)))
    a("v_cvt_f32_u32 %s, %s" % (v(F), v(F)))
    a("v_cndmask_b32 %s, 0, %s, %s" % (v(A0), v(DI + 1), s(sA, 2)))
    a("v_mul_f32 %s, %s, %s" % (v(F), fhex(1 / 40), v(F)))
    a("v_mul_f32 %s, 4.0, %s" % (v(DI + 2), v(vGF)))
    a("v_fmac_f32 %s, %s, %s" % (v(A0), v(F), v(DI + 2)))
    a("s_lshl_b32 %s, %s, 7" % (s(sB), s(sE)))
    a("v_add_u32 %s, %s, %s" % (v(aT1), s(sB), v(aT1)))
    cosrow(S1B, F, A0, [0, 1, 2, 3, 16, 17, 18, 19, 32, 33, 34, 35], T8)
    a("v_cndmask_b32 %s, %s, 0, %s" % (v(S1B + 6), v(S1B + 4), s(sM, 2)))
    a("v_cndmask_b32 %s, %s, 0, %s" % (v(S1B + 7), v(S1B + 5), s(sM, 2)))
    a("v_mov_b32 %s, 0" % v(S1B + 4))
    a("v_mov_b32 %s, 0" % v(S1B + 5))
    a("s_cmp_ge_u32 %s, 10" % s(sW))
    a("s_cbranch_scc1 L_c2done")
    a.c("stage-2 matrices: lane = k2, K = (half, d2)")
    D8 = DI + 2
    PH = DI + 3
    a("v_and_b32 %s, 16, %s" % (v(D8), v(vL)))
    a("v_lshrrev_b32 %s, 1, %s" % (v(aT2), v(vG)))
    a("v_xor_b32 %s, %s, %s" % (v(aT2), v(aT2), v(vN)))
    a("v_lshl_add_u32 %s, %s, 5, %s" % (v(aT2), v(aT2), v(D8)))
    a("s_mul_i32 %s, %s, 1056" % (s(sA), s(sW)))
    a("v_add_u32 %s, %s, %s" % (v(aT2), s(sA), v(aT2)))
    a("v_cvt_f32_u32 %s, %s" % (v(D8), v(D8)))
    a("v_mul_f32 %s, 0.5, %s" % (v(D8), v(D8)))
    a("v_cndmask_b32 %s, 0, -%s, %s" % (v(PH), v(DI + 1), s(sM, 2)))
    a("v_cvt_f32_u32 %s, %s" % (v(DI), s(sW)))
    a("v_fmamk_f32 %s, %s, %s, %s" % (v(DI), v(vNF), fhex(20), v(DI)))
    a("v_add_f32 %s, 0.5, %s" % (v(F), v(DI)))
    a("v_mul_f32 %s, %s, %s" % (v(F), fhex(1 / 320), v(F)))
    a("v_fma_f32 %s, %s, %s, %s" % (v(A0), v(F), v(D8), v(PH)))
    cosrow(M1, F, A0, list(range(8)), T8)
    a("s_cmp_eq_u32 %s, 0" % s(sW))
    a("s_cbranch_scc1 L_c2sp")
    a("v_mul_f32 %s, %s, %s" % (v(F), fhex(1 / 320), v(DI)))
    a("v_fma_f32 %s, %s, %s, %s" % (v(A0), v(F), v(D8), v(PH)))
    cosrow(M0A, F, A0, list(range(8)), T8)
    a("L_c2done:")

    a("s_waitcnt lgkmcnt(0)")
    a("s_not_b32 %s, %s" % (s(sT), s(sT)))
    a("v_mov_b32 %s, %s" % (v(vT), s(sT)))
    if wlate:
        a("s_waitcnt vmcnt(0)")
        stamp("xin")
        if wlate == 1:
            wload01()
    else:
        a("s_cmp_eq_u32 %s, 1" % s(sROLE))
        a("s_cbranch_scc1 L_xw0")
        a("s_waitcnt vmcnt(4)")
        a("s_branch L_xw1")
        a("L_xw0:")
        a("s_waitcnt vmcnt(0)")
        a("L_xw1:")
        stamp("xin")
    a("s_setprio 1")
    a("s_barrier")
    a("s_cmp_ge_u32 %s, 12" % s(sW))
    a("s_cbranch_scc1 L_var")
    A1, A2 = 28, 34
    for r, dst in ((0, A1), (5120, A2)):
        a("ds_read_b64_tr_b16 %s, %s offset:%d" % (v(dst, 2), v(aX1), r))
        a("ds_read_b64_tr_b16 %s, %s offset:%d" % (v(dst + 2, 2), v(aX1), r + 512))
        a("ds_read_b64_tr_b16 %s, %s offset:%d" % (v(dst + 4, 2), v(aX2), r + 1024))
    a("s_waitcnt lgkmcnt(0)")
    for src, d in ((A1, DR), (A2, DI)):
        a("v_mfma_f32_16x16x32_bf16 %s, %s, %s, 0" % (v(d, 4), v(src, 4), v(S1B, 4)))
        a("v_mfma_f32_16x16x32_bf16 %s, %s, %s, %s" % (v(d, 4), v(src + 2, 4), v(S1B + 4, 4), v(d, 4)))
    pack(DR, DI)
    a("ds_write_b64 %s, %s offset:%d" % (v(aT1), v(OP, 2), L_TB))
    a("ds_write_b64 %s, %s offset:%d" % (v(aT1), v(OP + 2, 2), L_TB + 64))
    a("L_s1done:")
    barrier()
    a("s_cmp_ge_u32 %s, 10" % s(sW))
    a("s_cbranch_scc1 L_s2other")
    a.c("stage 2: two tiles per wave")
    a("ds_read_b128 %s, %s offset:%d" % (v(28, 4), v(aT2), L_TB))
    a("ds_read_b128 %s, %s offset:%d" % (v(32, 4), v(aT2), L_TB + 528))
    a("v_bitop3_b32 %s, %s, %s, %s %s" % (v(SV + 1), v(vT), v(vM1), v(mS), B_ANDX))
    a("s_mul_i32 %s, %s, 10240" % (s(sA), s(sRHO)))
    a("s_lshl_b32 %s, %s, 10" % (s(sB), s(sW)))
    a("s_add_u32 %s, %s, %s" % (s(sA), s(sA), s(sB)))
    a("s_add_u32 %s, %s, 0x%x" % (s(sA), s(sA), WS_X))
    a("v_lshlrev_b32 %s, 2, %s" % (v(SV), v(vL)))
    a("s_cmp_lg_u32 %s, 0" % s(sW))
    a("s_waitcnt lgkmcnt(0)")
    for e in range(8):
        a("v_xor_b32 %s, %s, %s" % (v(28 + e), v(mS), v(28 + e)))
    a("v_mfma_f32_16x16x32_bf16 %s, %s, %s, 0" % (v(DR, 4), v(M0A, 4), v(28, 4)))
    a("v_mfma_f32_16x16x32_bf16 %s, %s, %s, 0" % (v(DI, 4), v(M1, 4), v(32, 4)))
    a("s_cbranch_scc1 L_s2n")
    a("v_mfma_f32_16x16x32_bf16 %s, %s, %s, 0" % (v(TM, 4), v(M0B, 4), v(28, 4)))
    for e in range(4):
        a("v_cndmask_b32 %s, %s, %s, %s" % (v(DR + e), v(DR + e), v(TM + e), s(sM + 2, 2)))
    a("L_s2n:")
    for e in range(4):
        a("v_cvt_pk_bf16_f32 %s, %s, %s" % (v(OP + e), v(DR + e), v(DI + e)))
    for e in range(4):
        a("v_bitop3_b32 %s, %s, %s, %s %s" % (v(OP + e), v(OP + e), v(vM1), v(SV + 1), B_TAG))
        a("buffer_store_dword %s, %s, %s, %s offen offset:%d sc1" % (v(OP + e), v(SV), s(SWS, 4), s(sA), 256 * e))
    a("L_s2done:")
    stamp("xst")
    a("s_setprio 0")
    a("s_mov_b32 %s, 0" % s(sL))
    a("s_cmp_eq_u32 %s, 0" % s(sROLE))
    a("s_cbranch_scc1 L_wtask")

    G4 = DI
    a("s_mul_i32 %s, %s, 20" % (s(sC), s(sD)))
    a("s_add_u32 %s, %s, %s" % (s(sC), s(sC), s(sRANK)))
    if opt.get("s0rep", 8) == 1:
        a("s_mov_b32 %s, 0x%x" % (s(sSOFF), WS_S0))
    else:
        a("s_lshl_b32 %s, %s, 15" % (s(sSOFF), s(sD)))
        a("s_add_u32 %s, %s, 0x%x" % (s(sSOFF), s(sSOFF), WS_S0))
    a("s_and_b32 %s, %s, %s" % (s(sU0), s(sT), s(sFF)))
    a("s_xor_b32 %s, %s, 0x2000" % (s(sU0), s(sU0)))
    a("v_and_b32 %s, 0x3fc, v0" % v(T8))
    a("v_mul_u32_u24 %s, 24, %s" % (v(T8), v(T8)))
    a("v_lshl_add_u32 %s, v0, 3, %s" % (v(aS), v(T8)))
    a("v_lshlrev_b32 %s, 2, %s" % (v(aG), v(vL)))
    a("v_mov_b32 %s, 0" % v(aSS))
    a("v_mul_f32 %s, 4.0, %s" % (v(G4), v(vGF)))
    a.c("16-point DFT matrix")
    a("v_mul_f32 %s, %s, %s" % (v(F), fhex(1 / 16), v(vNF)))
    a("v_mul_f32 %s, %s, %s" % (v(A0), v(F), v(G4)))
    sincos(T8, T8 + 4, F, A0, [0, 1, 2, 3])
    for e in range(2):
        a("v_cvt_pk_bf16_f32 %s, %s, %s" % (v(FM + 4 + e), v(T8 + 4 + 2 * e), v(T8 + 5 + 2 * e)))
        a("v_cvt_pk_bf16_f32 %s, %s, %s" % (v(FM + 2 + e), v(T8 + 2 * e), v(T8 + 1 + 2 * e)))
        a("v_xor_b32 %s, 0x80008000, %s" % (v(FM + e), v(FM + 4 + e)))
    a.c("radix-8 matrices, angle q*(16*j+n1)/128")
    H, Q4, W1 = DI + 1, DI + 2, DI + 3
    a("v_lshrrev_b32 %s, 1, %s" % (v(H), v(vN)))
    a("v_cvt_f32_u32 %s, %s" % (v(H), v(H)))
    a("v_fma_f32 %s, %s, -2.0, %s" % (v(Q4), v(H), v(vNF)))
    a("v_mul_f32 %s, 0x3e800000, %s" % (v(Q4), v(Q4)))
    a("v_cvt_f32_u32 %s, %s" % (v(W1), s(sW)))
    a("v_mul_f32 %s, %s, %s" % (v(F), fhex(1 / 128), v(H)))
    a("v_fmamk_f32 %s, %s, %s, %s" % (v(A0), v(vGF), fhex(32), v(W1)))
    a("v_fma_f32 %s, %s, %s, %s" % (v(T8), v(F), v(A0), v(Q4)))
    ang(T8 + 1, F, 16, T8)
    a("v_fmamk_f32 %s, %s, %s, %s" % (v(F), v(H), fhex(16), v(W1)))
    a("v_mul_f32 %s, %s, %s" % (v(F), fhex(1 / 128), v(F)))
    a("v_add_f32 %s, %s, %s" % (v(A0), v(vGF), v(vGF)))
    a("v_fma_f32 %s, %s, %s, -%s" % (v(T8 + 2), v(F), v(A0), v(Q4)))
    ang(T8 + 3, F, 1, T8 + 2)
    for e in range(4):
        a("v_sin_f32 %s, %s" % (v(T8 + 4 + e), v(T8 + e)))
    for e in range(4):
        a("v_cos_f32 %s, %s" % (v(T8 + e), v(T8 + e)))
    a.c("the Nyquist column (c = 0, tile 0) keeps only the real part")
    a("s_cmp_eq_u32 %s, 0" % s(sC))
    a("s_cselect_b64 %s, %s, 0" % (s(sA, 2), s(sM + 2, 2)))
    for e in range(2):
        a("v_cvt_pk_bf16_f32 %s, %s, %s" % (v(MA + e), v(T8 + e), v(T8 + 4 + e)))
        a("v_cvt_pk_bf16_f32 %s, %s, -%s" % (v(MI1 + e), v(T8 + 2 + e), v(T8 + 6 + e)))
        a("v_cndmask_b32 %s, %s, 0, %s" % (v(MI0 + e), v(MI1 + e), s(sA, 2)))
    a.c("layer-0 gather address; W piece: task (q, g, n>>2), column c*2+cc, kk = n&3")
    a("v_lshrrev_b32 %s, 2, %s" % (v(T8), v(vL)))
    a("v_and_b32 %s, 48, %s" % (v(T8 + 1), v(aW)))
    a("v_mul_u32_u24 %s, 10240, %s" % (v(T8), v(T8)))
    a("v_add_u32 %s, %s, %s" % (v(aP), v(T8), v(T8 + 1)))
    a("v_add_u32 %s, %s, %s" % (v(aW), v(aP), v(T8)))
    a("s_lshl_b32 %s, %s, 6" % (s(sPOFF), s(sC)))
    a("s_mul_i32 %s, %s, %d" % (s(sE), s(sW), 16 * 10240))
    a("s_add_u32 %s, %s, %s" % (s(sE), s(sE), s(sPOFF)))
    a("s_add_u32 %s, %s, 0x%x" % (s(sE), s(sE), WS_X))
    if opt.get("xack", 1):
        a("s_waitcnt vmcnt(0)")
    stamp("cc1")

    a("L_layer:")
    a("buffer_load_dwordx2 %s, %s, %s, %s offen sc1" % (v(SV, 2), v(aS), s(SWS, 4), s(sSOFF)))
    a("s_waitcnt vmcnt(0)")
    a("v_bitop3_b32 %s, %s, %s, %s %s" % (v(TM), v(SV), v(SV + 1), v(vT), B_MIS2))
    a("v_and_b32 %s, 0x3fff, %s" % (v(TM), v(TM)))
    a("v_cmp_ne_u32 vcc, 0, %s" % v(TM))
    a("s_cbranch_vccz L_sok")
    retry("L_layer")
    a("L_sok:")
    stamp("sok", 1)
    a("s_cmp_eq_u32 %s, 0" % s(sL))
    a("s_cbranch_scc1 L_getx")
    a("L_havex:")
    a.c("the low bits are known to equal the tag: replace them by the centre of the dropped range")
    a("v_xor_b32 %s, %s, %s" % (v(SV), s(sU0), v(SV)))
    a("v_xor_b32 %s, %s, %s" % (v(SV + 1), s(sU0), v(SV + 1)))
    for e in range(8):
        a("v_mul_f32 %s, %s, %s" % (v(TM + e), v(SV + ((e >> 1) & 1)), v(X + e)))
    pack(TM, TM + 4)
    a("v_mfma_f32_16x16x16_bf16 %s, %s, %s, 0" % (v(DR, 4), v(OP, 2), v(MA, 2)))
    a("v_mfma_f32_16x16x16_bf16 %s, %s, %s, 0" % (v(DI, 4), v(OP + 2, 2), v(MA, 2)))
    pack(DR, DI)
    a("ds_write_b64 %s, %s" % (v(aE1W), v(OP, 2)))
    a("ds_write_b64 %s, %s offset:%d" % (v(aE1W), v(OP + 2, 2), 16 * 520))
    stamp("e1w", 1)
    barrier()
    a("ds_read_b64_tr_b16 %s, %s" % (v(OP, 2), v(aE1R)))
    a("ds_read_b64_tr_b16 %s, %s offset:520" % (v(OP + 2, 2), v(aE1R)))
    a("s_waitcnt lgkmcnt(0)")
    stamp("e1r", 1)
    radix16(True, False)
    cmul(TF, TF + 4, -1)
    pack(TM, TM + 4)
    a("s_cmp_eq_u32 %s, 0" % s(sL))
    radix16(False, False)
    a("s_cbranch_scc1 L_wpoll")
    a("L_wready:")
    stamp("wrdy", 1)
    cmul(WC, WC + 4, +1)
    pack(TM + 4, TM)
    radix16(True, True)
    cmul(TI, TI + 4, +1)
    pack(TM + 4, TM)
    radix16(True, True)
    pack(DR, DI)
    a("ds_write_b64 %s, %s" % (v(aE2W), v(OP, 2)))
    a("ds_write_b64 %s, %s offset:32" % (v(aE2W), v(OP + 2, 2)))
    stamp("e2w", 1)
    a("s_setprio 1")
    barrier()
    a("ds_read_b64_tr_b16 %s, %s" % (v(OP, 2), v(aE2R)))
    a("ds_read_b64_tr_b16 %s, %s offset:512" % (v(OP + 2, 2), v(aE2R)))
    a("s_cmp_eq_u32 %s, 3" % s(sL))
    a("s_waitcnt lgkmcnt(0)")
    stamp("e2r", 1)
    a("v_mfma_f32_16x16x16_bf16 %s, %s, %s, %s" % (v(X, 4), v(MI0, 2), v(OP, 2), v(X, 4)))
    a("v_mfma_f32_16x16x16_bf16 %s, %s, %s, %s" % (v(X + 4, 4), v(MI1, 2), v(OP + 2, 2), v(X + 4, 4)))
    a("s_cbranch_scc1 L_delta")
    a.c("partial sums of squares for two rows, sign bits carry the tag")
    a("v_mul_f32 %s, %s, %s" % (v(TM), v(X), v(X)))
    a("v_mul_f32 %s, %s, %s" % (v(TM + 1), v(X + 2), v(X + 2)))
    for e in (1, 4, 5):
        a("v_fmac_f32 %s, %s, %s" % (v(TM), v(X + e), v(X + e)))
        a("v_fmac_f32 %s, %s, %s" % (v(TM + 1), v(X + e + 2), v(X + e + 2)))
    a("v_cvt_pk_bf16_f32 %s, %s, %s" % (v(TM), v(TM), v(TM + 1)))
    a("v_bitop3_b32 %s, %s, %s, %s %s" % (v(TM), v(TM), s(sKS), v(vT), B_INS))
    a("buffer_store_dword %s, %s, %s, %s offen sc1" % (v(TM), v(aP), s(SWS, 4), s(sPOFF)))
    stamp("pst", 1)
    a("s_setprio 0")
    a.c("work that fits in the time the store takes")
    a("s_cmp_eq_u32 %s, 1" % s(sL))
    a("s_cbranch_scc1 L_sh1")
    a("s_cmp_eq_u32 %s, 2" % s(sL))
    a("s_cbranch_scc1 L_sh2")
    a("s_branch L_sh0")
    a("L_shret:")
    a("s_waitcnt vmcnt(0)")
    a("L_shret2:")
    a("s_setprio 1")
    stamp("pack", 1)
    if opt.get("pbar", 1):
        a("s_barrier")
    stamp("pbar", 1)
    a("s_cmp_ge_u32 %s, 10" % s(sW))
    a("s_cbranch_scc1 L_rskip")
    a("L_ppoll:")
    for e in range(4):
        a("buffer_load_dword %s, %s, %s, %s offen offset:%d sc1" % (v(OP + e), v(aG), s(SWS, 4), s(sPG), 256 * e))
    a("s_waitcnt vmcnt(0)")
    a("v_mfma_f32_16x16x32_bf16 %s, %s, %s, 0" % (v(DR, 4), v(SEL, 4), v(OP, 4)))
    check4(OP, s(sKS), "L_pok")
    retry("L_ppoll")
    a("L_pok:")
    stamp("pok", 1)
    a("s_bfm_b64 exec, 16, 0")
    a("ds_write2_b32 %s, %s, %s offset0:0 offset1:12" % (v(aRW), v(DR), v(DR + 1)))
    a("s_mov_b64 exec, -1")
    a("L_rskip:")
    a("s_cmp_ge_u32 %s, 4" % s(sW))
    barrier()
    stamp("rbar", 1)
    a("s_cbranch_scc1 L_sskip")
    a("ds_read_b128 %s, %s" % (v(DR, 4), v(aRR)))
    a("ds_read_b128 %s, %s offset:16" % (v(DI, 4), v(aRR)))
    a("ds_read_b64 %s, %s offset:32" % (v(TM, 2), v(aRR)))
    a("v_mov_b32 %s, %s" % (v(TM + 2), fhex(1e-5 * 2048.0 ** 2)))
    a("s_mov_b32 %s, %s" % (s(sB), fhex(2 * 2048.0 ** 2 / 640.0 ** 2)))
    a("s_waitcnt lgkmcnt(0)")
    a("v_pk_add_f32 %s, %s, %s" % (v(DR, 2), v(DR, 2), v(DR + 2, 2)))
    a("v_pk_add_f32 %s, %s, %s" % (v(DI, 2), v(DI, 2), v(DI + 2, 2)))
    a("v_pk_add_f32 %s, %s, %s" % (v(TM, 2), v(TM, 2), v(DR, 2)))
    a("v_pk_add_f32 %s, %s, %s" % (v(TM, 2), v(TM, 2), v(DI, 2)))
    a("v_add_f32 %s, %s, %s" % (v(TM), v(TM), v(TM + 1)))
    a("v_fma_f32 %s, |%s|, %s, %s" % (v(TM), v(TM), s(sB), v(TM + 2)))
    a("v_rsq_f32 %s, %s" % (v(TM), v(TM)))
    a("v_bitop3_b32 %s, %s, %s, %s %s" % (v(TM), v(TM), s(sFF), v(vT), B_INS))
    a("buffer_store_dword %s, %s, %s, %s offen sc1" % (v(TM), v(aSS), s(SWS, 4), s(sSST)))
    stamp("sst", 1)
    a("L_sskip:")
    a("s_setprio 0")
    a("s_add_u32 %s, %s, 1" % (s(sL), s(sL)))
    a("s_add_u32 %s, %s, 0x20000" % (s(sSOFF), s(sSOFF)))
    a("s_add_u32 %s, %s, 0x20000" % (s(sSST), s(sSST)))
    a("s_add_u32 %s, %s, %d" % (s(sPOFF), s(sPOFF), P_SZ))
    a("s_add_u32 %s, %s, %d" % (s(sPG), s(sPG), P_SZ))
    a("s_cmp_eq_u32 %s, 1" % s(sL))
    a("s_cbranch_scc1 L_getwb")
    a("L_havewb:")
    a("s_waitcnt vmcnt(0)")
    a("s_barrier")
    stamp("sbar", 1)
    a("s_branch L_layer")

    a("L_getx:")
    stamp("s0ok")
    a("buffer_load_dwordx4 %s, %s, %s, %s offen sc1" % (v(XP, 4), v(aP), s(SWS, 4), s(sE)))
    a("v_lshlrev_b32 %s, 3, v0" % v(aS))
    a("s_lshl_b32 %s, %s, 13" % (s(sSOFF), s(sD)))
    a("s_add_u32 %s, %s, 0x%x" % (s(sSOFF), s(sSOFF), WS_S))
    a.c("twiddles n2*(q+8*k1)/2048 in both layouts")
    a("s_and_b32 %s, %s, 7" % (s(sA), s(sW)))
    a("v_cvt_f32_u32 %s, %s" % (v(AMP), s(sA)))
    a("v_fmamk_f32 %s, %s, %s, %s" % (v(F), v(vNF), fhex(8), v(AMP)))
    a("v_mul_f32 %s, %s, %s" % (v(F), fhex(1 / 2048), v(F)))
    a("v_mul_f32 %s, %s, %s" % (v(A0), v(F), v(G4)))
    sincos(TF, TF + 4, F, A0, [0, 1, 2, 3])
    a("v_fmamk_f32 %s, %s, %s, %s" % (v(A0), v(G4), fhex(8), v(AMP)))
    a("v_mul_f32 %s, %s, %s" % (v(F), fhex(1 / 2048), v(vNF)))
    a("v_mul_f32 %s, %s, %s" % (v(A0), v(F), v(A0)))
    sincos(TI, TI + 4, F, A0, [0, 8, 16, 24])
    a("s_mul_i32 %s, %s, %d" % (s(sWOFF), s(sA), 16 * 20480))
    a("s_lshr_b32 %s, %s, 3" % (s(sA), s(sW)))
    a("s_lshl1_add_u32 %s, %s, %s" % (s(sA), s(sC), s(sA)))
    a("s_lshl_b32 %s, %s, 6" % (s(sA), s(sA)))
    a("s_add_u32 %s, %s, %s" % (s(sWOFF), s(sWOFF), s(sA)))
    a("s_add_u32 %s, %s, 0x%x" % (s(sWOFF), s(sWOFF), WS_W))
    a("v_lshlrev_b32 %s, 3, %s" % (v(T8), v(vG)))
    a("s_movk_i32 %s, 520" % s(sB))
    a("v_mad_u32_u24 %s, %s, %s, %s" % (v(T8), v(vN), s(sB), v(T8)))
    a("s_lshl_b32 %s, %s, 5" % (s(sA), s(sW)))
    a("s_add_u32 %s, %s, %d" % (s(sB), s(sA), L_E1))
    a("v_add_u32 %s, %s, %s" % (v(aE1W), s(sB), v(T8)))
    a("v_lshl_add_u32 %s, %s, 9, %s" % (v(T8), v(vN), v(T8)))
    a("s_lshl1_add_u32 %s, %s, %d" % (s(sB), s(sA), L_E2))
    a("v_add_u32 %s, %s, %s" % (v(aE2W), s(sB), v(T8)))
    a("s_mul_i32 %s, %s, %d" % (s(sA), s(sW), 1040 - 512))
    a("s_add_u32 %s, %s, %d" % (s(sA), s(sA), L_E1))
    a("v_add_u32 %s, %s, %s" % (v(aE1R), s(sA), v(aS)))
    a("s_mul_i32 %s, %s, %d" % (s(sA), s(sW), 1032 - 512))
    a("s_add_u32 %s, %s, %d" % (s(sA), s(sA), L_E2))
    a("v_add_u32 %s, %s, %s" % (v(aE2R), s(sA), v(aS)))
    a("s_setprio 1")
    a("L_xpoll:")
    a("s_waitcnt vmcnt(0)")
    check4(XP, v(vM1), "L_xok")
    a("buffer_load_dwordx4 %s, %s, %s, %s offen sc1" % (v(XP, 4), v(aP), s(SWS, 4), s(sE)))
    retry("L_xpoll")
    a("s_waitcnt vmcnt(0)")
    a("L_xok:")
    a("buffer_load_dwordx4 %s, %s, %s, %s offen sc1" % (v(WL, 4), v(aW), s(SWS, 4), s(sWOFF)))
    unpack4(XP, lambda e: X + e, lambda e: X + 4 + e)
    a("v_lshrrev_b32 %s, 4, v0" % v(aP))
    a("v_mul_u32_u24 %s, 10240, %s" % (v(aP), v(aP)))
    a("v_lshl_add_u32 %s, %s, 2, %s" % (v(aP), v(vN), v(aP)))
    a("s_add_u32 %s, %s, 0x%x" % (s(sPOFF), s(sPOFF), WS_P))
    stamp("xok")
    a("s_branch L_havex")

    def wget(tag, dst, back):
        a("L_wpoll%s:" % tag)
        a("s_waitcnt vmcnt(0)")
        check4(WL, v(vM1), "L_wok%s" % tag)
        a("buffer_load_dwordx4 %s, %s, %s, %s offen sc1" % (v(WL, 4), v(aW), s(SWS, 4), s(sWOFF)))
        retry("L_wpoll%s" % tag)
        a("s_waitcnt vmcnt(0)")
        a("L_wok%s:" % tag)
        unpack4(WL, lambda e: dst + 2 * e, lambda e: dst + 2 * e + 1)
        a("s_branch %s" % back)

    wget("", WC, "L_wready")
    a("L_getwb:")
    for e in range(8):
        a("v_mov_b32 %s, %s" % (v(WO + e), v(WC + e)))
    wget("b", WC, "L_havewb")

    a("L_c2sp:")
    a.c("tile 0: slots 0..7 come from class 0 (slot 0 = Nyquist / sqrt 2), slots 8..15 from class 20")
    a("s_mov_b32 %s, 0xff00ff00" % s(sA))
    a("s_mov_b32 %s, %s" % (s(sB), s(sA)))
    a("v_add_f32 %s, %s, %s" % (v(F), fhex(10), v(DI)))
    a("v_cndmask_b32 %s, %s, %s, %s" % (v(DI), v(DI), v(F), s(sA, 2)))
    a("s_xor_b64 %s, %s, %s" % (s(sA, 2), s(sA, 2), s(sM, 2)))
    a("s_mov_b32 vcc_lo, 0x00010001")
    a("s_mov_b32 vcc_hi, vcc_lo")
    a("v_mov_b32 %s, %s" % (v(F), fhex(160)))
    a("v_cndmask_b32 %s, %s, %s, vcc" % (v(F), v(DI), v(F)))
    a("v_mul_f32 %s, %s, %s" % (v(F), fhex(1 / 320), v(F)))
    a("v_mov_b32 %s, %s" % (v(AMP), fhex(0.5 ** 0.5)))
    a("v_cndmask_b32 %s, 1.0, %s, vcc" % (v(AMP), v(AMP)))
    a("v_mul_f32 %s, %s, %s" % (v(A0), v(F), v(D8)))
    a("v_cndmask_b32 %s, %s, 0, %s" % (v(AMP), v(AMP), s(sA, 2)))
    cosrow(M0A, F, A0, list(range(8)), T8, AMP)
    a("s_andn2_b64 %s, %s, vcc" % (s(sA, 2), s(sA, 2)))
    a("v_cndmask_b32 %s, %s, -%s, %s" % (v(PH), v(DI + 1), v(DI + 1), s(sM, 2)))
    a("v_add_f32 %s, %s, %s" % (v(A0), v(A0), v(PH)))
    cosrow(M0B, F, A0, list(range(8)), T8)
    for e in range(4):
        a("v_cndmask_b32 %s, 0, %s, %s" % (v(M0B + e), v(M0B + e), s(sA, 2)))
    a("s_branch L_c2done")

    a("L_var:")
    a.c("row statistics: one row per half wave")
    a("v_lshrrev_b32 %s, 5, %s" % (v(DR + 2), v(vL)))
    a("s_movk_i32 %s, 5120" % s(sA))
    a("v_mad_u32_u24 %s, %s, %s, %s" % (v(aX2), v(DR + 2), s(sA), v(aX2)))
    for e in range(5):
        a("ds_read_b64 %s, %s offset:%d" % (v(28 + 2 * e, 2), v(aX2), 256 * e))
    a("v_mov_b32 %s, 0" % v(TM))
    a("v_mov_b32 %s, 0" % v(TM + 1))
    a("v_mov_b32 %s, 0x3f803f80" % v(TM + 2))
    a("s_lshl_b32 %s, %s, 3" % (s(sA), s(sE)))
    a("v_lshl_add_u32 %s, %s, 2, %s" % (v(DR + 2), v(DR + 2), s(sA)))
    a("s_waitcnt lgkmcnt(0)")
    for e in range(10):
        a("v_dot2c_f32_bf16 %s, %s, %s" % (v(TM), v(28 + e), v(28 + e)))
        a("v_dot2c_f32_bf16 %s, %s, %s" % (v(TM + 1), v(28 + e), v(TM + 2)))
    for sh in (1, 2, 4, 8):
        for r in (TM, TM + 1):
            a("v_add_f32_dpp %s, %s, %s row_ror:%d row_mask:0xf bank_mask:0xf" % (v(r), v(r), v(r), sh))
    a("v_mov_b32 %s, %s" % (v(TM + 2), v(TM)))
    a("v_mov_b32 %s, %s" % (v(TM + 3), v(TM + 1)))
    a("v_permlane16_swap_b32 %s, %s" % (v(TM), v(TM + 2)))
    a("v_permlane16_swap_b32 %s, %s" % (v(TM + 1), v(TM + 3)))
    a("v_add_f32 %s, %s, %s" % (v(TM), v(TM), v(TM + 2)))
    a("v_add_f32 %s, %s, %s" % (v(TM + 1), v(TM + 1), v(TM + 3)))
    a("v_mul_f32 %s, %s, %s" % (v(TM), fhex(2048.0 ** 2 / 640), v(TM)))
    a("v_mul_f32 %s, %s, %s" % (v(TM + 1), fhex(2048.0 / 640), v(TM + 1)))
    a("v_fma_f32 %s, -%s, %s, %s" % (v(TM), v(TM + 1), v(TM + 1), v(TM)))
    a("v_max_f32 %s, 0, %s" % (v(TM), v(TM)))
    a("v_add_f32 %s, %s, %s" % (v(TM), fhex(1e-5 * 2048.0 ** 2), v(TM)))
    a("v_rsq_f32 %s, %s" % (v(TM), v(TM)))
    a("v_bitop3_b32 %s, %s, %s, %s %s" % (v(TM), v(TM), s(sFF), v(vT), B_INS))
    a("ds_write_b32 %s, %s offset:%d" % (v(DR + 2), v(TM), L_S0))
    a("s_branch L_s1done")
    a("L_s2other:")
    a("s_cmp_lg_u32 %s, 10" % s(sW))
    a("s_cbranch_scc1 L_s2done")
    a.c("publish the eight layer-0 scales: one whole line per replica")
    a("v_and_b32 %s, 16, %s" % (v(SV), v(aW)))
    a("ds_read_b128 %s, %s offset:%d" % (v(TM, 4), v(SV), L_S0))
    a("v_lshrrev_b32 %s, 3, %s" % (v(SV + 1), v(vL)))
    a("v_and_b32 %s, 112, %s" % (v(SV), v(aW)))
    a("v_lshl_add_u32 %s, %s, 15, %s" % (v(SV), v(SV + 1), v(SV)))
    a("s_lshl_b32 %s, %s, 7" % (s(sA), s(sRHO)))
    a("s_add_u32 %s, %s, 0x%x" % (s(sA), s(sA), WS_S0))
    if opt.get("s0rep", 8) == 1:
        a("s_bfm_b64 exec, 8, 0")
    a("s_waitcnt lgkmcnt(0)")
    a("buffer_store_dwordx4 %s, %s, %s, %s offen sc1" % (v(TM, 4), v(SV), s(SWS, 4), s(sA)))
    a("s_mov_b64 exec, -1")
    a("s_branch L_s2done")

    a("L_wtask:")
    if wlate == 2:
        wload01()
        a("s_waitcnt vmcnt(0)")
    a.c("wait for the first two W loads; this wave's younger stores stay in flight")
    a("s_waitcnt vmcnt(4)")
    a("s_cmp_lt_u32 %s, 10" % s(sW))
    a("s_cbranch_scc1 L_wtw")
    a("s_waitcnt vmcnt(1)")
    a("s_cmp_eq_u32 %s, 10" % s(sW))
    a("s_cbranch_scc1 L_wtw")
    a("s_waitcnt vmcnt(0)")
    a("L_wtw:")
    a("s_add_u32 %s, s2, 32" % s(sSIG))
    a("s_cmp_ge_u32 %s, 256" % s(sSIG))
    a("s_cbranch_scc1 L_wt3")
    a("s_bfm_b64 exec, 41, 0")
    wload(2)
    a("s_mov_b64 exec, -1")
    a("L_wt3:")
    a.c("round R: tp = R>>1, k2 = 4*((l>>3)&3) + 2*(R&1) + (l>>5), cc = (l>>2)&1, kk = l&3")
    K2, TT, KA, KB, KC = DR, DR + 1, DR + 2, DR + 3, DI
    a("v_bfe_u32 %s, %s, 3, 2" % (v(K2), v(vL)))
    a("v_lshrrev_b32 %s, 5, %s" % (v(TT), v(vL)))
    a("v_lshl_add_u32 %s, %s, 2, %s" % (v(K2), v(K2), v(TT)))
    a("s_and_b32 %s, %s, 1" % (s(sA), s(sW)))
    a("s_lshl_b32 %s, %s, 1" % (s(sA), s(sA)))
    a("v_add_u32 %s, %s, %s" % (v(K2), s(sA), v(K2)))
    a("v_bfe_u32 %s, %s, 2, 1" % (v(TT), v(vL)))
    a("v_mad_u32_u24 %s, %s, 40, %s" % (v(KB), v(K2), v(TT)))
    a("s_and_b32 %s, %s, 14" % (s(sA), s(sW)))
    a("v_add_u32 %s, %s, %s" % (v(KA), s(sA), v(KB)))
    a("s_and_b32 %s, %s, 2" % (s(sB), s(sW)))
    a("s_add_u32 %s, %s, 16" % (s(sB), s(sB)))
    a("v_add_u32 %s, %s, %s" % (v(KB), s(sB), v(KB)))
    a.c("tile 0: upper slots are class 20, slot 0 is the Nyquist column")
    a("s_cmp_eq_u32 %s, 0" % s(sA))
    a("s_cselect_b32 %s, 0x0f0f0000, 0" % s(sA))
    a("s_mov_b32 %s, %s" % (s(sB), s(sA)))
    a("v_add_u32 %s, 20, %s" % (v(TT), v(KA)))
    a("v_cndmask_b32 %s, %s, %s, %s" % (v(KA), v(KA), v(TT), s(sA, 2)))
    a("v_mov_b32 %s, 320" % v(TT))
    a("v_cmp_eq_u32 %s, 0, %s" % (s(sA, 2), v(KA)))
    a("v_and_b32 %s, 3, %s" % (v(KC), v(vL)))
    a("v_mul_u32_u24 %s, 656, %s" % (v(KC), v(KC)))
    a("v_cndmask_b32 %s, %s, %s, %s" % (v(KA), v(KA), v(TT), s(sA, 2)))
    for k in (KA, KB):
        a("v_sub_u32 %s, 640, %s" % (v(TT), v(k)))
        a("v_min_u32 %s, %s, %s" % (v(k), v(k), v(TT)))
        a("v_lshl_add_u32 %s, %s, 1, %s" % (v(k), v(k), v(KC)))
    a("v_and_b32 %s, %s, %s" % (v(SV + 1), v(vT), v(vM1)))
    a("s_sub_u32 %s, s2, 160" % s(sSIG))
    a("s_movk_i32 %s, %d" % (s(sE), L_WI))
    a("s_lshr_b32 %s, %s, 2" % (s(sU0), s(sW)))
    a("s_barrier")
    stamp("win")
    a("L_wt:")
    a("s_mov_b32 %s, %s" % (s(sD), s(sW)))
    a("v_mov_b32 %s, %s" % (v(KC), v(KA)))
    a("L_wt2:")
    a("s_bfe_u32 %s, %s, 0x30004" % (s(sA), s(sSIG)))
    a("s_lshl1_add_u32 %s, %s, %s" % (s(sA), s(sA), s(sE)))
    a("v_add_u32 %s, %s, %s" % (v(KC), s(sA), v(KC)))
    for arr in range(2):
        for i in range(4):
            a("ds_read_u16 %s, %s offset:%d" % (v(TM + 4 * arr + i), v(KC), (arr * 16 + 4 * i) * 656))
    a("s_mul_i32 %s, %s, 20" % (s(sA), s(sSIG)))
    a("s_add_u32 %s, %s, %s" % (s(sA), s(sA), s(sD)))
    a("s_lshl_b32 %s, %s, 10" % (s(sA), s(sA)))
    a("s_add_u32 %s, %s, 0x%x" % (s(sA), s(sA), WS_W))
    a("s_waitcnt lgkmcnt(0)")
    for e in range(4):
        a("v_lshl_or_b32 %s, %s, 16, %s" % (v(OP + e), v(TM + 2 * e + 1), v(TM + 2 * e)))
    for e in range(4):
        a("v_bitop3_b32 %s, %s, %s, %s %s" % (v(OP + e), v(OP + e), v(vM1), v(SV + 1), B_TAG))
    a("buffer_store_dwordx4 %s, %s, %s, %s offen sc1" % (v(OP, 4), v(aW), s(SWS, 4), s(sA)))
    a("s_cmp_lg_u32 %s, %s" % (s(sU0), s(sL)))
    a("s_cbranch_scc1 L_wtn")
    a("s_mov_b32 %s, 4" % s(sU0))
    a("s_and_b32 %s, %s, 3" % (s(sD), s(sW)))
    a("s_add_u32 %s, %s, 16" % (s(sD), s(sD)))
    a("v_mov_b32 %s, %s" % (v(KC), v(KB)))
    a("s_branch L_wt2")
    a("L_wtn:")
    a("s_add_u32 %s, %s, 1" % (s(sL), s(sL)))
    a("s_add_u32 %s, %s, 96" % (s(sSIG), s(sSIG)))
    a("s_add_u32 %s, %s, %d" % (s(sE), s(sE), WBUF))
    a("s_cmp_eq_u32 %s, 1" % s(sL))
    a("s_cbranch_scc1 L_wt")
    a("s_cmp_ge_u32 %s, 256" % s(sSIG))
    a("s_cbranch_scc1 L_wtdone")
    a("s_waitcnt vmcnt(0)")
    a("s_barrier")
    a("s_branch L_wt")
    a("L_wtdone:")
    stamp("wdone")

    a("s_branch L_fc0")
    a("L_sh0:")
    stamp("p0st")
    a("s_add_u32 %s, %s, %d" % (s(sWOFF), s(sWOFF), 128 * 20480))
    a("buffer_load_dwordx4 %s, %s, %s, %s offen sc1" % (v(WL, 4), v(aW), s(SWS, 4), s(sWOFF)))
    a.c("reduction addresses; selector matrix: row 0 sums low halves, row 1 high halves")
    a("s_and_b32 %s, %s, 63" % (s(sB), s(sC)))
    a("s_mul_i32 %s, %s, 10" % (s(sPG), s(sB)))
    a("s_add_u32 %s, %s, %s" % (s(sPG), s(sPG), s(sW)))
    a("s_lshl_b32 %s, %s, 10" % (s(sPG), s(sPG)))
    a("s_add_u32 %s, %s, 0x%x" % (s(sPG), s(sPG), WS_P))
    a("s_cmp_ge_u32 %s, 64" % s(sC))
    a("s_cselect_b32 %s, 4, 0" % s(sA))
    a("s_add_u32 %s, %s, %s" % (s(sA), s(sA), s(sW)))
    a("s_lshl_b32 %s, %s, 7" % (s(sA), s(sA)))
    a("s_add_u32 %s, %s, %s" % (s(sA), s(sA), s(sB)))
    a("s_lshl_b32 %s, %s, 7" % (s(sA), s(sA)))
    a("s_add_u32 %s, %s, 0x%x" % (s(sSST), s(sA), WS_S + 0x20000))
    a("s_lshl2_add_u32 %s, %s, %d" % (s(sA), s(sW), L_RED))
    a("v_mul_u32_u24 %s, 96, %s" % (v(aRW), v(vN)))
    a("v_add_u32 %s, %s, %s" % (v(aRW), s(sA), v(aRW)))
    a("v_and_b32 %s, 31, %s" % (v(T8), v(vL)))
    a("v_mul_u32_u24 %s, 48, %s" % (v(aRR), v(T8)))
    a("v_add_u32 %s, %d, %s" % (v(aRR), L_RED, v(aRR)))
    a("v_and_b32 %s, 32, %s" % (v(aSS), v(vL)))
    a("v_lshlrev_b32 %s, 8, %s" % (v(aSS), v(aSS)))
    a("v_lshl_add_u32 %s, %s, 2, %s" % (v(aSS), v(T8), v(aSS)))
    a("s_mov_b32 %s, 0x00030003" % s(sA))
    a("s_mov_b32 %s, %s" % (s(sB), s(sA)))
    a("v_mov_b32 %s, 0x3f80" % v(T8))
    a("v_cndmask_b32 %s, %s, 1.0, %s" % (v(T8), v(T8), s(sM + 2, 2)))
    a("v_cndmask_b32 %s, 0, %s, %s" % (v(SEL), v(T8), s(sA, 2)))
    for e in range(1, 4):
        a("v_mov_b32 %s, %s" % (v(SEL + e), v(SEL)))
    a("L_fc0:")
    a("s_cmp_ge_u32 %s, 12" % s(sW))
    a("s_cbranch_scc1 L_fc0e")
    a.c("inverse stage-1 matrix: lane = d1, K = (t, part)")
    a("s_and_b32 %s, %s, 12" % (s(sA), s(sW)))
    a("v_cvt_f32_u32 %s, %s" % (v(F), s(sA)))
    a("v_fma_f32 %s, %s, 4.0, %s" % (v(F), v(F), v(vNF)))
    a("v_mul_f32 %s, %s, %s" % (v(F), fhex(1 / 40), v(F)))
    a("v_add_f32 %s, %s, %s" % (v(A0), v(vGF), v(vGF)))
    a("v_mul_f32 %s, %s, %s" % (v(AMP), v(F), v(A0)))
    a("v_add_f32 %s, %s, %s" % (v(A0), v(AMP), v(AMP)))
    sincos(T8, T8 + 4, F, A0, [0, 1, 2, 3])
    sincos(OP, OP + 2, F, AMP, [16, 17])
    a("v_cndmask_b32 %s, -1.0, 1.0, %s" % (v(A0), s(sM + 2, 2)))
    a("s_bfm_b64 %s, 16, 0" % s(sA, 2))
    a("v_cndmask_b32 %s, %s, %s, %s" % (v(T8 + 4), v(T8 + 4), v(A0), s(sA, 2)))
    for e in range(4):
        a("v_cvt_pk_bf16_f32 %s, %s, -%s" % (v(S1I + e), v(T8 + e), v(T8 + 4 + e)))
    for e in range(2):
        a("v_cvt_pk_bf16_f32 %s, %s, -%s" % (v(S1I + 6 + e), v(OP + e), v(OP + 2 + e)))
        a("v_cndmask_b32 %s, %s, 0, %s" % (v(S1I + 6 + e), v(S1I + 6 + e), s(sM, 2)))
        a("v_mov_b32 %s, 0" % v(S1I + 4 + e))
    a("L_fc0e:")
    a("s_cmp_eq_u32 %s, 1" % s(sROLE))
    a("s_waitcnt vmcnt(1)")
    a("s_cbranch_scc1 L_shret2")

    def inv2_base():
        a("v_mul_f32 %s, %s, %s" % (v(F), fhex(1 / 320), v(vNF)))
        a("v_cvt_f32_u32 %s, %s" % (v(A0), s(sW)))
        a("v_fmamk_f32 %s, %s, %s, %s" % (v(A0), v(vGF), fhex(80), v(A0)))
        a("v_mul_f32 %s, %s, %s" % (v(A0), v(F), v(A0)))

    a("s_branch L_fc1")
    a("L_sh1:")
    for e in range(8):
        a("v_swap_b32 %s, %s" % (v(WC + e), v(WO + e)))
    a("L_fc1:")
    a("s_cmp_ge_u32 %s, 10" % s(sW))
    a("s_cbranch_scc1 L_fc1e")
    a.c("inverse stage-2 matrices of the odd tile: lane = d2, K = (k2, tile)")
    inv2_base()
    sincos(T8, T8 + 4, F, A0, [0.5, 20.5, 40.5, 60.5])
    for e in range(8):
        a("v_cvt_pk_bf16_f32 %s, 0, %s" % (v(PQ + 8 + e), v(T8 + e)))
    a("L_fc1e:")
    a("s_cmp_eq_u32 %s, 1" % s(sROLE))
    a("s_cbranch_scc1 L_shret")

    a("s_branch L_fc2")
    a("L_sh2:")
    for e in range(8):
        a("v_mov_b32 %s, %s" % (v(WC + e), v(WO + e)))
    unpack4(XP, lambda e: WO + e, lambda e: WO + 4 + e)
    a("L_fc2:")
    a("s_cmp_ge_u32 %s, 10" % s(sW))
    a("s_cbranch_scc1 L_fc2e")
    a.c("inverse stage-2 matrices of the even tile")
    inv2_base()
    a("v_mov_b32 %s, 0xfffefffe" % v(mP))
    a("v_mov_b32 %s, %s" % (v(mQ), v(mP)))
    a("s_cmp_lg_u32 %s, 0" % s(sW))
    a("s_cbranch_scc1 L_fcn")
    a("v_mov_b32 %s, 0x3e800000" % v(TM))
    a("v_fmamk_f32 %s, %s, %s, %s" % (v(TM), v(F), fhex(10), v(TM)))
    a("v_cndmask_b32 %s, 0, %s, %s" % (v(TM), v(TM), s(sM, 2)))
    a("v_add_f32 %s, %s, %s" % (v(A0), v(A0), v(TM)))
    a("s_xor_b64 %s, %s, %s" % (s(sA, 2), s(sM, 2), s(sM + 2, 2)))
    a("v_mov_b32 %s, 0xfffe0000" % v(TM))
    a("v_cndmask_b32 %s, %s, %s, %s" % (v(mQ), v(TM), v(mQ), s(sA, 2)))
    a("v_cndmask_b32 %s, %s, %s, %s" % (v(mP), v(mP), v(TM), s(sA, 2)))
    a("L_fcn:")
    sincos(T8, T8 + 4, F, A0, [0, 20, 40, 60])
    a.c("Nyquist slot (wave 0, g = 0, first K): (-1)^d2 / sqrt 2")
    a("s_cmp_eq_u32 %s, 0" % s(sW))
    a("s_cselect_b32 %s, 0xffff, 0" % s(sA))
    a("s_mov_b32 %s, 0" % s(sB))
    a("v_mov_b32 %s, %s" % (v(AMP), fhex(0.5 ** 0.5)))
    a("v_cndmask_b32 %s, %s, -%s, %s" % (v(AMP), v(AMP), v(AMP), s(sM + 2, 2)))
    a("v_cndmask_b32 %s, %s, %s, %s" % (v(T8), v(T8), v(AMP), s(sA, 2)))
    for e in range(8):
        a("v_cvt_pk_bf16_f32 %s, %s, 0" % (v(PQ + e), v(T8 + e)))
    a("L_fc2e:")
    a("s_cmp_eq_u32 %s, 1" % s(sROLE))
    a("s_cbranch_scc1 L_shret")
    a("s_branch L_final")

    a("L_delta:")
    a("s_lshl_b32 %s, %s, 14" % (s(sA), s(sC)))
    a("s_add_u32 %s, %s, 0x%x" % (s(sA), s(sA), WS_D))
    a("v_add_u32 %s, %s, %s" % (v(SV), v(aS), v(aS)))
    a("v_and_b32 %s, %s, %s" % (v(SV + 1), v(vT), v(vM1)))
    for e in range(8):
        a("v_sub_f32 %s, %s, %s" % (v(TM + e), v(X + e), v(WO + e)))
    if opt.get("dround", 1):
        a("s_mov_b32 %s, 0x07060302" % s(sB))
        for e in range(8):
            a("v_add_u32 %s, 0x10000, %s" % (v(TM + e), v(TM + e)))
        for e in range(4):
            a("v_perm_b32 %s, %s, %s, %s" % (v(OP + e), v(TM + 4 + e), v(TM + e), s(sB)))
    else:
        for e in range(4):
            a("v_cvt_pk_bf16_f32 %s, %s, %s" % (v(OP + e), v(TM + e), v(TM + 4 + e)))
    for e in range(4):
        a("v_bitop3_b32 %s, %s, %s, %s %s" % (v(OP + e), v(OP + e), v(vM1), v(SV + 1), B_TAG))
    a("buffer_store_dwordx4 %s, %s, %s, %s offen sc1" % (v(OP, 4), v(SV), s(SWS, 4), s(sA)))
    stamp("dst")
    a("s_setprio 0")

    a("L_final:")
    aU1, aU2, aU3, aXO = aE1W, aE1R, aE2W, aE2R
    a.c("message c = tp*16 + i*4 + g, dword n")
    a("v_lshlrev_b32 %s, 14, %s" % (v(SV), v(vG)))
    a("v_lshl_add_u32 %s, %s, 2, %s" % (v(SV), v(vN), v(SV)))
    a("s_lshl_b32 %s, %s, 6" % (s(sE), s(sRHO)))
    a("s_add_u32 %s, %s, 0x%x" % (s(sE), s(sE), WS_D))
    a.c("U address: row*1280 + d2*80 + tp*8, rows 2g and 2g+1")
    a("v_mul_u32_u24 %s, 80, %s" % (v(aU2), v(vN)))
    a("v_mul_u32_u24 %s, 2560, %s" % (v(aU1), v(vG)))
    a("s_lshl_b32 %s, %s, 3" % (s(sA), s(sW)))
    a("v_add3_u32 %s, %s, %s, %s" % (v(aU1), v(aU1), v(aU2), s(sA)))
    a("s_and_b32 %s, %s, 3" % (s(sD), s(sW)))
    a("s_mul_i32 %s, %s, 2560" % (s(sA), s(sD)))
    a("v_add_u32 %s, %s, %s" % (v(aU2), s(sA), v(aU2)))
    a("v_and_b32 %s, 1, %s" % (v(aU3), v(vG)))
    a("v_lshl_add_u32 %s, %s, 3, %s" % (v(aU3), v(aU3), v(aU2)))
    a("v_lshl_add_u32 %s, %s, 4, %s" % (v(aU2), v(vG), v(aU2)))
    a.c("x / out offset inside the row: d1*32 + g*8")
    a("s_and_b32 %s, %s, 12" % (s(sA), s(sW)))
    a("s_lshl_b32 %s, %s, 2" % (s(sA), s(sA)))
    a("v_add_u32 %s, %s, %s" % (v(aXO), s(sA), v(vN)))
    a("v_cmp_gt_u32 %s, 40, %s" % (s(sM, 2), v(aXO)))
    a("v_min_u32 %s, 39, %s" % (v(aXO), v(aXO)))
    a("v_lshlrev_b32 %s, 5, %s" % (v(aXO), v(aXO)))
    a("v_lshl_add_u32 %s, %s, 3, %s" % (v(aXO), v(vG), v(aXO)))
    a("s_mul_i32 %s, %s, 1280" % (s(sA), s(sD)))
    a("v_add_u32 %s, %s, %s" % (v(aXO), s(sA), v(aXO)))
    XR = 32
    a("ds_read_b64 %s, %s" % (v(26, 2), v(aXO)))
    a("ds_read_b64 %s, %s offset:5120" % (v(28, 2), v(aXO)))
    a("s_waitcnt lgkmcnt(0)")
    for e in range(4):
        a("v_lshlrev_b32 %s, 16, %s" % (v(XR + 2 * e), v(26 + e)))
        a("v_and_b32 %s, 0xffff0000, %s" % (v(XR + 2 * e + 1), v(26 + e)))
    a("v_mov_b32 %s, %s" % (v(24), fhex(1 / 320)))
    a("s_cmp_eq_u32 %s, 1" % s(sROLE))
    a("s_cbranch_scc1 L_fgo")
    a("s_cmp_lg_u32 %s, 0" % s(sW))
    a("s_cbranch_scc1 L_fgo")
    a.c("workgroups without columns watch a single message until the last layer is out")
    a("s_and_b32 %s, %s, 127" % (s(sA), s(sRHO)))
    a("s_lshl_b32 %s, %s, 14" % (s(sA), s(sA)))
    a("s_add_u32 %s, %s, %s" % (s(sA), s(sA), s(sE)))
    a("v_lshlrev_b32 %s, 2, %s" % (v(SV + 1), v(vN)))
    a("L_canary:")
    a("buffer_load_dword %s, %s, %s, %s offen sc1" % (v(TM), v(SV + 1), s(SWS, 4), s(sA)))
    a("s_waitcnt vmcnt(0)")
    a("v_bitop3_b32 %s, %s, %s, %s %s" % (v(TM), v(TM), v(vT), v(vM1), bitop(lambda d, t, m: (d ^ t) & m)))
    a("v_cmp_ne_u32 vcc, 0, %s" % v(TM))
    a("s_cbranch_vccz L_fgo")
    retry("L_canary")
    a("L_fgo:")
    a("s_lshl_b32 %s, %s, 18" % (s(sA), s(sW)))
    a("s_add_u32 %s, %s, %s" % (s(sA), s(sA), s(sE)))
    a("s_add_u32 %s, %s, 0x10000" % (s(sB), s(sA)))
    a("s_add_u32 %s, %s, 0x20000" % (s(sD), s(sA)))
    a("s_add_u32 %s, %s, 0x30000" % (s(sE), s(sA)))
    a("s_cmp_ge_u32 %s, 10" % s(sW))
    a("s_waitcnt vmcnt(0)")
    a("s_barrier")
    stamp("fgo")
    a("s_cbranch_scc1 L_f2done")
    a("L_dpoll:")
    for e, so in enumerate((sA, sB, sD, sE)):
        a("buffer_load_dword %s, %s, %s, %s offen sc1" % (v(OP + e), v(SV), s(SWS, 4), s(so)))
    a("s_waitcnt vmcnt(0)")
    check4(OP, v(vM1), "L_dok")
    retry("L_dpoll")
    a("L_dok:")
    for e in range(4):
        a("v_bitop3_b32 %s, %s, %s, %s %s" % (v(TM + e), v(OP + e), v(mP), v(mS), B_ANDX))
    for e in range(4):
        a("v_bitop3_b32 %s, %s, %s, %s %s" % (v(TM + 4 + e), v(OP + e), v(mQ), v(mS), B_ANDX))
    P0, Q0, P1, Q1 = 8, 12, 16, 20
    a("v_mfma_f32_16x16x32_bf16 %s, %s, %s, 0" % (v(P0, 4), v(TM, 4), v(PQ, 4)))
    a("v_mfma_f32_16x16x32_bf16 %s, %s, %s, 0" % (v(Q0, 4), v(TM + 4, 4), v(PQ + 4, 4)))
    a("v_mfma_f32_16x16x32_bf16 %s, %s, %s, 0" % (v(P1, 4), v(TM, 4), v(PQ + 8, 4)))
    a("v_mfma_f32_16x16x32_bf16 %s, %s, %s, 0" % (v(Q1, 4), v(TM + 4, 4), v(PQ + 12, 4)))
    for k, (p, q) in enumerate(((P0, Q0), (P1, Q1))):
        for r in range(2):
            a("v_sub_f32 %s, %s, %s" % (v(p + 2 * r), v(p + 2 * r), v(q + 2 * r + 1)))
            a("v_add_f32 %s, %s, %s" % (v(p + 2 * r + 1), v(p + 2 * r + 1), v(q + 2 * r)))
        for r in range(2):
            a("v_cvt_pk_bf16_f32 %s, %s, %s" % (v(OP + 2 * r + k), v(p + 2 * r), v(p + 2 * r + 1)))
    a("ds_write_b64 %s, %s offset:%d" % (v(aU1), v(OP, 2), L_TB))
    a("ds_write_b64 %s, %s offset:%d" % (v(aU1), v(OP + 2, 2), L_TB + 1280))
    a("L_f2done:")
    a("s_cmp_ge_u32 %s, 12" % s(sW))
    barrier()
    stamp("f2")
    ost = opt.get("ost", 0)
    oflag = {0: "", 1: " sc1", 2: " nt", 3: " sc0 sc1"}[opt.get("oflag", 0)]
    a("s_cbranch_scc1 L_f1done")
    for r, dst in ((0, 8), (1280, 16)):
        a("ds_read_b128 %s, %s offset:%d" % (v(dst, 4), v(aU2), L_TB + r))
        a("ds_read_b64 %s, %s offset:%d" % (v(dst + 4, 2), v(aU3), L_TB + r + 64))
    a("s_add_u32 %s, %s, %d" % (s(sB), s(sROWB), 256 * 1280))
    a("s_waitcnt lgkmcnt(0)")
    for src, d in ((8, DR), (16, DI)):
        a("v_mfma_f32_16x16x32_bf16 %s, %s, %s, 0" % (v(d, 4), v(src, 4), v(S1I, 4)))
        a("v_mfma_f32_16x16x32_bf16 %s, %s, %s, %s" % (v(d, 4), v(src + 2, 4), v(S1I + 4, 4), v(d, 4)))
    for e in range(8):
        a("v_fmac_f32 %s, %s, %s" % (v(XR + e), v(24), v(DR + e)))
    pack(XR, XR + 4)
    a("s_mov_b64 exec, %s" % s(sM, 2))
    if ost == 0:
        a("buffer_store_dwordx2 %s, %s, %s, %s offen%s" % (v(OP, 2), v(aXO), s(SO, 4), s(sROWB), oflag))
        a("buffer_store_dwordx2 %s, %s, %s, %s offen%s" % (v(OP + 2, 2), v(aXO), s(SO, 4), s(sB), oflag))
        a("s_mov_b64 exec, -1")
        a("L_f1done:")
    else:
        a("ds_write_b64 %s, %s" % (v(aXO), v(OP, 2)))
        a("ds_write_b64 %s, %s offset:5120" % (v(aXO), v(OP + 2, 2)))
        a("s_mov_b64 exec, -1")
        a("L_f1done:")
        a("v_lshlrev_b32 %s, 4, v0" % v(SV))
        a("s_cmp_ge_u32 %s, 5" % s(sW))
        a("s_cselect_b32 %s, %d, 0" % (s(sB), 256 * 1280 - 5120))
        a("s_add_u32 %s, %s, %s" % (s(sB), s(sB), s(sROWB)))
        a("s_cmp_ge_u32 %s, 10" % s(sW))
        barrier()
        a("s_cbranch_scc1 L_fin")
        a("ds_read_b128 %s, %s" % (v(OP, 4), v(SV)))
        a("s_waitcnt lgkmcnt(0)")
        a("buffer_store_dwordx4 %s, %s, %s, %s offen%s" % (v(OP, 4), v(SV), s(SO, 4), s(sB), oflag))
    a("L_fin:")
    a.c("the next launch tags its hand-offs with the complement of this word")
    a("s_lshl_b32 %s, s2, 4" % s(sA))
    a("s_add_u32 %s, %s, %s" % (s(sA), s(sA), s(sW)))
    a("s_cmp_lg_u32 %s, 15" % s(sA))
    a("s_cbranch_scc1 L_noe")
    a("v_mov_b32 %s, 0x%x" % (v(SV), WS_E))
    a("buffer_store_dword %s, %s, %s, 0 offen sc1" % (v(vT), v(SV), s(SWS, 4)))
    a("L_noe:")
    if stamps:
        a("s_waitcnt vmcnt(0)")
        stamp("end")
        a("s_waitcnt lgkmcnt(0)")
        a("s_lshl_b32 %s, %s, 6" % (s(sA), s(sA)))
        a("s_add_u32 %s, %s, 0x%x" % (s(sA), s(sA), WS_T))
        a("v_mov_b32 %s, 0" % v(SV))
        for k in range(nst[0]):
            a("v_mov_b32 %s, %s" % (v(TM), s(sST + 2 * k)))
            a("buffer_store_dword %s, %s, %s, %s offen offset:%d" % (v(TM), v(SV), s(SWS, 4), s(sA), 4 * k))
        a("v_mov_b32 %s, %s" % (v(TM), s(sSPIN)))
        a("buffer_store_dword %s, %s, %s, %s offen offset:60" % (v(TM), v(SV), s(SWS, 4), s(sA)))
    if "hold" in opt:
        k = names.index(opt["hold"])
        if "role" in opt:
            a("s_cmp_lg_u32 %s, %d" % (s(sROLE), opt["role"]))
            a("s_cbranch_scc1 L_end")
        if "wave" in opt:
            a("s_cmp_lg_u32 %s, %d" % (s(sW), opt["wave"]))
            a("s_cbranch_scc1 L_end")
        a("s_sub_u32 %s, %s, %s" % (s(sA), s(sST + 2 * k), s(sST)))
        a("s_add_u32 %s, %s, 4000" % (s(sA), s(sA)))
        a("s_min_u32 %s, %s, 20000" % (s(sA), s(sA)))
        a("L_hold:")
        a("s_memrealtime %s" % s(sD, 2))
        a("s_waitcnt lgkmcnt(0)")
        a("s_sub_u32 %s, %s, %s" % (s(sB), s(sD), s(sST)))
        a("s_cmp_lt_u32 %s, %s" % (s(sB), s(sA)))
        a("s_cbranch_scc1 L_hold")
    a("L_end:")
    a("s_endpgm")

    head = open("interleave_layers__spectral_gfnet__spectral_gfnet__prompt.s.ref").read()
    head = "".join(l + "\n" for l in head.split("\n") if l.startswith(";") and "@launch" not in l)
    out = head + "; stamps: %s\n" % " ".join(names) if stamps else head
    out += "; @launch grid=(256,1,1) block=(1024,1,1) lds=%d\n" % L_END
    out += '.amdgcn_target "amdgcn-amd-amdhsa--gfx950"\n.text\n.globl %s\n.p2align 8\n.type %s,@function\n%s:\n' % (
        NAME, NAME, NAME)
    out += a.text()
    out += ".p2align 8\n.fill 1024, 4, 0xbf810000\n"
    out += """.section .rodata,"a"
.p2align 6
.amdhsa_kernel %s
  .amdhsa_next_free_vgpr %d
  .amdhsa_next_free_sgpr 102
  .amdhsa_accum_offset %d
  .amdhsa_group_segment_fixed_size 0
  .amdhsa_kernarg_size 72
  .amdhsa_user_sgpr_count 2
  .amdhsa_user_sgpr_kernarg_segment_ptr 1
  .amdhsa_system_sgpr_workgroup_id_x 1
.end_amdhsa_kernel
""" % (NAME, NV, NV)
    return out


if __name__ == "__main__":
    dst = sys.argv[1]
    opt = {}
    for x in sys.argv[2:]:
        if "=" in x:
            k_, v_ = x.split("=")
            opt[k_] = int(v_) if v_.isdigit() else v_
    open(dst, "w").write(gen(stamps="stamps" in sys.argv[2:], opt=opt))
```
